```python
import torch

def _softmax(x, axis=-1):
    return torch.softmax(x, dim=axis)
def _gelu(x):
    return torch.nn.functional.gelu(x, approximate="tanh")
def _silu(x):
    return torch.nn.functional.silu(x)
def _sigmoid(x):
    return torch.sigmoid(x)
def _layernorm(x, axis=-1, eps=1e-5):
    m = x.mean(dim=axis, keepdim=True)
    v = x.var(dim=axis, keepdim=True, unbiased=False)
    return (x - m) / torch.sqrt(v + eps)
def _scatter_add(tgt, idx, src, axis=0):
    return tgt.clone().index_add_(axis, idx, src)
def _segment_sum(src, seg, n):
    out = torch.zeros((n,) + src.shape[1:], dtype=src.dtype)
    return out.index_add_(0, seg, src)
def _pad(x, pw):
    flat = tuple(v for pair in reversed(pw) for v in pair)
    return torch.nn.functional.pad(x, flat)

kernel_name = 'interleave_layers__spectral_gfnet__glu_gated_reglu__prompt'

def setup_inputs():

    _w = (lambda a: (lambda t: t.to(torch.bfloat16) if t.is_floating_point() else t)(torch.as_tensor(a)))
    def _A_setup():
        B, S, D = 1, 2048, 640
        Df = D // 2 + 1
        return {
            "x": _w((lambda *s: torch.randn(*s, dtype=torch.bfloat16) * 0.05)(B, S, D)),
            "w_r": _w((lambda *s: torch.randn(*s, dtype=torch.bfloat16) * 0.4)(S, Df) * 0.02),
            "w_i": _w((lambda *s: torch.randn(*s, dtype=torch.bfloat16) * 0.4)(S, Df) * 0.02),
        }
    _A_in = _A_setup()

    def _B_setup():
        B, S, D, F = 1, 2048, 640, 1536
        return {
            "x": _w((lambda *s: torch.randn(*s, dtype=torch.bfloat16) * 0.05)(B, S, D)),
            "W_gate": _w((lambda *s: torch.randn(*s, dtype=torch.bfloat16) * 0.2)(D, F) * (2.0 / D) ** 0.5),
            "W_up": _w((lambda *s: torch.randn(*s, dtype=torch.bfloat16) * 0.2)(D, F) * (2.0 / D) ** 0.5),
            "W_down": _w((lambda *s: torch.randn(*s, dtype=torch.bfloat16) * 0.2)(F, D) * (1.0 / F) ** 0.5),
        }
    _B_in = _B_setup()

    return {
        "A_x": _A_in["x"],
        "A_w_r": _A_in["w_r"],
        "A_w_i": _A_in["w_i"],
        "B_x": _B_in["x"],
        "B_W_gate": _B_in["W_gate"],
        "B_W_up": _B_in["W_up"],
        "B_W_down": _B_in["W_down"],
    }

def reference(A_x, A_w_r, A_w_i, B_x, B_W_gate, B_W_up, B_W_down):
    def _A_ref(x, w_r, w_i):
        B, S, D = x.shape
        X = (lambda x, axes=(-2,-1): torch.fft.rfft2(x.float(), dim=axes))(x, axes=(-2, -1))
        W = w_r + 1j * w_i
        X = X * W
        y = (lambda x, s, axes=(-2,-1): torch.fft.irfft2(x, s=s, dim=axes).to(torch.bfloat16))(X, (S, D), axes=(-2, -1))
        return y

    def _B_ref(x, W_gate, W_up, W_down):
        gate = torch.einsum("bsd,df->bsf", x, W_gate)
        up = torch.einsum("bsd,df->bsf", x, W_up)
        gate = gate * (lambda x, dt: x.to(dt))(gate > 0, gate.dtype)
        h = gate * up
        return torch.einsum("bsf,fd->bsd", h, W_down)

    x = A_x
    x = x + _A_ref(_layernorm(x, axis=-1), A_w_r, A_w_i)
    x = x + _B_ref(_layernorm(x, axis=-1), B_W_gate, B_W_up, B_W_down)
    x = x + _A_ref(_layernorm(x, axis=-1), A_w_r, A_w_i)
    x = x + _B_ref(_layernorm(x, axis=-1), B_W_gate, B_W_up, B_W_down)
    return x
```

```python
import re

REG_RE = re.compile(r'^(-|\|)?(abs\()?([vas])(\d+|\[(\d+):(\d+)\])\)?\|?$')


def regs_of(op):
    op = op.strip()
    if op in ('vcc',):
        return {('s', 'vcc_lo'), ('s', 'vcc_hi')}
    if op in ('vcc_lo', 'vcc_hi', 'm0', 'exec_lo', 'exec_hi'):
        return {('s', op)}
    if op == 'exec':
        return {('s', 'exec_lo'), ('s', 'exec_hi')}
    m = REG_RE.match(op)
    if not m:
        return set()
    c = m.group(3)
    if m.group(5) is not None:
        return {(c, i) for i in range(int(m.group(5)), int(m.group(6)) + 1)}
    return {(c, int(m.group(4)))}


TRANS = ('v_exp_f32', 'v_log_f32', 'v_rcp_f32', 'v_rsq_f32', 'v_sqrt_f32', 'v_sin_f32', 'v_cos_f32', 'v_rcp_iflag_f32')


class Ins:
    def __init__(self, text):
        self.text = text
        t = text.split(';')[0].strip()
        self.is_label = t.endswith(':')
        self.is_dir = t.startswith('.')
        self.mn = ''
        self.ops = []
        self.mods = ''
        self.rd = set()
        self.wr = set()
        self.kind = 'other'
        if not t or self.is_label or self.is_dir:
            self.kind = 'none'
            return
        parts = t.split(None, 1)
        self.mn = parts[0]
        rest = parts[1] if len(parts) > 1 else ''
        ops = []
        cur = ''
        depth = 0
        for ch in rest:
            if ch in '[(':
                depth += 1
            if ch in '])':
                depth -= 1
            if ch == ',' and depth == 0:
                ops.append(cur.strip())
                cur = ''
            else:
                cur += ch
        if cur.strip():
            ops.append(cur.strip())
        if ops:
            sp = ops[-1].split(None, 1)
            ops[-1] = sp[0]
            self.mods = sp[1] if len(sp) > 1 else ''
        self.ops = ops
        mn = self.mn
        R = [regs_of(o) for o in ops]
        U = lambda l: set().union(*l) if l else set()
        base = re.sub(r'_(e32|e64|dpp|sdwa)$', '', mn)
        self.base = base
        self.is_dpp = mn.endswith('_dpp') or 'row_' in self.mods or 'quad_perm' in self.mods
        if mn.startswith('v_mfma'):
            self.kind = 'mfma'
            self.wr = R[0]
            self.srcA, self.srcB, self.srcC = R[1], R[2], R[3]
            self.rd = R[1] | R[2] | R[3]
            self.passes = 4 if '16x16x32' in mn else (8 if '32x32x16' in mn else None)
            assert self.passes, mn
        elif mn.startswith('v_'):
            self.kind = 'valu'
            if base.startswith('v_permlane') and 'swap' in base:
                self.wr = R[0] | R[1]
                self.rd = R[0] | R[1]
            elif base in ('v_add_co_u32', 'v_sub_co_u32', 'v_addc_co_u32', 'v_subb_co_u32'):
                self.wr = R[0] | R[1]
                self.rd = U(R[2:])
            elif base in ('v_fmac_f32', 'v_dot2c_f32_bf16', 'v_pk_fmac_f16'):
                self.wr = R[0]
                self.rd = U(R)
            elif base == 'v_nop':
                pass
            else:
                self.wr = R[0]
                self.rd = U(R[1:])
                if base.startswith('v_cmpx'):
                    self.wr |= regs_of('exec')
                if self.is_dpp or 'sdwa' in mn or base == 'v_writelane_b32':
                    self.rd |= R[0]
        elif mn.startswith('ds_'):
            self.kind = 'ds'
            if mn.startswith('ds_read') or mn.startswith('ds_bpermute') or mn.startswith('ds_permute') or mn.startswith('ds_swizzle'):
                self.wr = R[0]
                self.rd = U(R[1:])
                if 'd16' in mn:
                    self.rd |= R[0]
            else:
                self.rd = U(R)
        elif mn.startswith('buffer_') or mn.startswith('global_'):
            self.kind = 'vmem'
            is_lds = ' lds' in (' ' + self.mods) or '_lds_' in mn
            self.is_lds = is_lds
            if mn in ('buffer_inv', 'buffer_wbl2'):
                pass
            elif is_lds:
                self.rd = U(R) | {('s', 'm0')}
            elif '_load' in mn:
                self.wr = R[0]
                self.rd = U(R[1:])
                if 'd16' in mn:
                    self.rd |= R[0]
            elif mn.startswith('buffer_atomic') and 'sc0' in self.mods:
                self.wr = R[0]
                self.rd = U(R)
            elif mn.startswith('global_atomic') and 'sc0' in self.mods:
                self.wr = R[0]
                self.rd = U(R[1:])
            else:
                self.rd = U(R)
            self.wide_store = ('store' in mn) and (mn.endswith('x3') or mn.endswith('x4'))
            if self.wide_store:
                self.sdata = R[0] if mn.startswith('buffer_') else R[1]
        elif mn.startswith('s_'):
            self.kind = 'salu'
            if mn.startswith('s_cmp') or mn in ('s_waitcnt', 's_nop', 's_barrier', 's_endpgm', 's_sleep', 's_setprio') or 'branch' in mn:
                self.rd = U(R)
            else:
                self.wr = R[0] if R else set()
                self.rd = U(R[1:])
                if 'saveexec' in mn:
                    self.wr |= regs_of('exec')
        else:
            raise ValueError('unknown instruction: ' + text)

    def states(self):
        if self.kind == 'none':
            return 0
        if self.mn == 's_nop':
            return int(self.ops[0], 0) + 1
        return 1


def vonly(s):
    return {r for r in s if r[0] in 'va'}


def sonly(s):
    return {r for r in s if r[0] == 's'}


def required(p, c):
    need = 0
    if p.kind == 'valu':
        pv = vonly(p.wr)
        ps = sonly(p.wr)
        if c.kind == 'mfma':
            if pv & c.rd:
                need = max(need, 2)
            if ('s', 'exec_lo') in ps:
                need = max(need, 4)
        if c.kind == 'valu':
            if c.is_dpp and (pv & c.rd):
                need = max(need, 2)
            if c.base.startswith('v_permlane') and (pv & c.rd):
                need = max(need, 2)
            if c.base in ('v_readfirstlane_b32', 'v_readlane_b32') and (pv & c.rd):
                need = max(need, 1)
            if p.base in TRANS and (pv & (c.rd | c.wr)):
                need = max(need, 1)
            if ('sdwa' in p.mn or 'op_sel' in p.mods) and not p.base.startswith('v_pk_') and (pv & (c.rd | c.wr)):
                need = max(need, 1)
            if ps & c.rd:
                need = max(need, 4 if c.base in ('v_readlane_b32', 'v_writelane_b32', 'v_div_fmas_f32') else 2)
            if c.base == 'v_cndmask_b32' and len(c.ops) == 3 and ('s', 'vcc_lo') in ps:
                need = max(need, 2)
            if ('s', 'exec_lo') in ps and (c.is_dpp or c.base.startswith('v_permlane') or 'lane' in c.base):
                need = max(need, 5)
        if c.kind == 'vmem' and (ps & c.rd):
            need = max(need, 5)
        if c.kind == 'salu' and (ps & c.rd):
            need = max(need, 1)
        if p.base in TRANS and c.kind in ('vmem', 'ds') and (pv & c.rd):
            need = max(need, 1)
    if p.kind == 'mfma':
        n = p.passes
        if c.kind == 'mfma':
            if p.wr & (c.srcA | c.srcB):
                need = max(need, {4: 8, 8: 12}[n])
            if p.wr & c.srcC:
                if not (p.wr == c.srcC and p.passes == c.passes):
                    need = max(need, {4: 6, 8: 10}[n])
            elif p.wr & c.wr:
                need = max(need, {4: 8, 8: 12}[n])
        elif c.kind in ('valu', 'vmem', 'ds'):
            if p.wr & (c.rd | c.wr):
                need = max(need, {4: 8, 8: 12}[n])
            if (p.srcC & c.wr):
                need = max(need, {4: 3, 8: 7}[n])
    if p.kind == 'vmem' and p.wide_store:
        if p.sdata & c.wr:
            need = max(need, 2)
    if p.kind == 'ds' and p.mn in ('ds_write_b128', 'ds_write_b96') and c.kind == 'valu' and (vonly(p.rd) & c.wr):
        need = max(need, 0)
    if p.kind == 'salu':
        if ('s', 'm0') in p.wr and c.kind == 'vmem' and c.is_lds:
            need = max(need, 1)
        if ('s', 'm0') in p.wr and c.kind == 'ds' and 'addtid' in c.mn:
            need = max(need, 1)
        if ('s', 'exec_lo') in p.wr and c.kind == 'valu' and c.is_dpp:
            need = max(need, 1)
    return need


def fix_hazards(lines):
    out = []
    hist = []
    nops = 0
    for t in lines:
        ins = Ins(t)
        if ins.kind == 'none':
            out.append(t)
            continue
        dist = 0
        need = 0
        for p in reversed(hist):
            r = required(p, ins)
            if r - dist > need:
                need = r - dist
            dist += p.states()
            if dist >= 20:
                break
        if need > 0:
            nt = f'    s_nop {need - 1}'
            out.append(nt)
            hist.append(Ins(nt))
            nops += 1
        out.append(t)
        hist.append(ins)
        if len(hist) > 40:
            hist = hist[-30:]
        if ins.mn == 's_endpgm':
            hist = []
    return out, nops


class Asm:
    def __init__(self):
        self.lines = []

    def __call__(self, text):
        for l in text.split('\n'):
            l = l.strip()
            if not l:
                continue
            if l.endswith(':') or l.startswith('.'):
                self.lines.append(l)
            else:
                self.lines.append('    ' + l)

    def c(self, text):
        self.lines.append('    ; ' + text)

    def text(self):
        o, n = fix_hazards(self.lines)
        return '\n'.join(o) + '\n'


def v(i, n=1):
    return f'v{i}' if n == 1 else f'v[{i}:{i + n - 1}]'


def a(i, n=1):
    return f'a{i}' if n == 1 else f'a[{i}:{i + n - 1}]'


def s(i, n=1):
    return f's{i}' if n == 1 else f's[{i}:{i + n - 1}]'


class Alloc:
    def __init__(self, start, limit):
        self.p = start
        self.limit = limit
        self.hi = start

    def get(self, n=1, align=1):
        if n >= 2 and align < 2:
            align = 2
        self.p = (self.p + align - 1) // align * align
        r = self.p
        self.p += n
        assert self.p <= self.limit, f'out of registers {self.p} > {self.limit}'
        self.hi = max(self.hi, self.p)
        return r

    def mark(self):
        return self.p

    def release(self, m):
        self.p = m


import struct


def f2u(x):
    return struct.unpack('<I', struct.pack('<f', x))[0]


def fhex(x):
    return f'0x{f2u(x):08x}'


def descriptor(name, vgpr, agpr, sgpr):
    acc = (vgpr + 3) // 4 * 4
    nfv = acc + agpr if agpr else vgpr
    return f""".p2align 6
.amdhsa_kernel {name}
  .amdhsa_next_free_vgpr {nfv}
  .amdhsa_next_free_sgpr {sgpr}
  .amdhsa_accum_offset {acc}
  .amdhsa_group_segment_fixed_size 0
  .amdhsa_kernarg_size 80
  .amdhsa_user_sgpr_count 2
  .amdhsa_user_sgpr_kernarg_segment_ptr 1
  .amdhsa_system_sgpr_workgroup_id_x 1
  .amdhsa_float_denorm_mode_32 3
.end_amdhsa_kernel
"""
```

```python
from asmlib import *
from layout import *
import math

SC = math.sqrt(2.0 / 640.0)
MID_K = 4112
K1_LDS = 11 * MID_K
NX, NGU, ND, NWT = 64, 96, 48, 64
K1_GRID = NX + NGU + ND + NWT


def srd(A, d, lo, off, size):
    if off:
        A(f's_add_u32 s{d}, s{lo}, {off}')
        A(f's_addc_u32 s{d + 1}, s{lo + 1}, 0')
    else:
        A(f's_mov_b32 s{d}, s{lo}')
        A(f's_mov_b32 s{d + 1}, s{lo + 1}')
    A(f's_mov_b32 s{d + 2}, {size}')
    A(f's_mov_b32 s{d + 3}, 0x20000')


def args8(A, dst, u, g4f, tmp):
    A(f'v_mul_f32 v{dst}, v{u}, v{g4f}')
    A(f'v_add_f32 v{dst + 1}, v{dst}, v{u}')
    A(f'v_fma_f32 v{dst + 2}, v{u}, 2.0, v{dst}')
    A(f'v_fma_f32 v{dst + 3}, v{u}, 2.0, v{dst + 1}')
    A(f'v_mul_f32 v{tmp}, 0x41800000, v{u}')
    for e in range(4):
        A(f'v_add_f32 v{dst + 4 + e}, v{dst + e}, v{tmp}')


def trig_frag(A, cdst, sdst, arg, t0, neg_sin=False):
    for h in range(4):
        A(f'v_cos_f32 v{t0}, v{arg + 2 * h}')
        A(f'v_cos_f32 v{t0 + 1}, v{arg + 2 * h + 1}')
        A(f'v_sin_f32 v{t0 + 2}, v{arg + 2 * h}')
        A(f'v_sin_f32 v{t0 + 3}, v{arg + 2 * h + 1}')
        A(f'v_cvt_pk_bf16_f32 v{cdst + h}, v{t0}, v{t0 + 1}')
        if neg_sin:
            A(f'v_cvt_pk_bf16_f32 v{sdst + h}, -v{t0 + 2}, -v{t0 + 3}')
        else:
            A(f'v_cvt_pk_bf16_f32 v{sdst + h}, v{t0 + 2}, v{t0 + 3}')


def cmul8(A, re, im, c, sn, ore, oim, t, conj):
    for h in range(4):
        r = re[h >> 1] + 2 * (h & 1)
        m = im[h >> 1] + 2 * (h & 1)
        cc = c + 2 * h
        ss = sn + 2 * h
        neg = 'neg_lo:[1,0,0] neg_hi:[1,0,0]'
        A(f'v_pk_mul_f32 {v(t, 2)}, {v(r, 2)}, {v(cc, 2)}')
        A(f'v_pk_mul_f32 {v(t + 2, 2)}, {v(m, 2)}, {v(cc, 2)}')
        A(f'v_pk_fma_f32 {v(t, 2)}, {v(m, 2)}, {v(ss, 2)}, {v(t, 2)} ' + ('' if conj else neg))
        A(f'v_pk_fma_f32 {v(t + 2, 2)}, {v(r, 2)}, {v(ss, 2)}, {v(t + 2, 2)} ' + (neg if conj else ''))
        A(f'v_cvt_pk_bf16_f32 v{ore + h}, v{t}, v{t + 1}')
        A(f'v_cvt_pk_bf16_f32 v{oim + h}, v{t + 2}, v{t + 3}')


def mfma(A, d, x, y, c=None):
    cs = '0' if c is None else c
    A(f'v_mfma_f32_16x16x32_bf16 {d}, {x}, {y}, {cs}')


P_X, P_WR, P_WI, P_BX, P_WG, P_WU, P_WD, P_OUT, P_WS = 4, 6, 8, 10, 12, 14, 16, 18, 20
SW = 22
SIDX = 23
SIN = 24
SO1 = 28
SO2 = 32
ST = 36


def gen_fft_role(A, role):
    R = Alloc(1, 128)
    lane = R.get(); n_ = R.get(); g_ = R.get(); l16 = R.get()
    C20 = R.get(4, 4); NS20 = R.get(4, 4)
    TC = R.get(8, 2); TS = R.get(8, 2)
    C2 = R.get(4, 4); S2 = R.get(4, 4); CI = R.get(4, 4); SI = R.get(4, 4)
    AF = R.get(32, 4)
    DD = R.get(32, 4)
    T = R.get(4, 2)
    AD = R.get(8)
    g4f = R.get(); u = R.get()
    stride = {'X': 1312, 'D': 1312, 'GU': 1296}[role]

    A(f'v_and_b32 v{lane}, 63, v0')
    A(f'v_lshlrev_b32 v{l16}, 4, v{lane}')
    if role in ('X', 'D'):
        ptr = P_X if role == 'X' else P_WD
        srd(A, SIN, ptr, 0, (2048 if role == 'X' else 1536) * 1280)
        A(f's_lshl_b32 s{ST}, s{SIDX}, 3')
        A(f's_add_u32 s{ST}, s{ST}, s{SW}')
        A(f's_mul_i32 s{ST}, s{ST}, 5120')
        A(f's_add_u32 s{ST + 1}, s{ST}, 4096')
        for j in range(5):
            so = ST if j < 4 else ST + 1
            A(f'buffer_load_dwordx4 {v(AF + 4 * j, 4)}, v{l16}, s[{SIN}:{SIN + 3}], s{so} offen offset:{(1024 * j) % 4096}')
    else:
        A(f's_cmp_lt_u32 s{SW}, 4')
        A(f's_cselect_b32 s{SIN}, s{P_WG}, s{P_WU}')
        A(f's_cselect_b32 s{SIN + 1}, s{P_WG + 1}, s{P_WU + 1}')
        A(f's_mov_b32 s{SIN + 2}, {640 * 3072}')
        A(f's_mov_b32 s{SIN + 3}, 0x20000')
        A(f'v_lshrrev_b32 v{AD}, 1, v{lane}')
        A(f'v_mul_u32_u24 v{AD}, 3072, v{AD}')
        A(f'v_and_b32 v{AD + 1}, 1, v{lane}')
        A(f'v_lshl_add_u32 v{AD}, v{AD + 1}, 4, v{AD}')
        A(f's_and_b32 s{ST}, s{SW}, 3')
        A(f's_mul_i32 s{ST}, s{ST}, {160 * 3072}')
        A(f's_lshl_b32 s{ST + 1}, s{SIDX}, 5')
        A(f's_add_u32 s{ST}, s{ST}, s{ST + 1}')
        A(f's_mul_i32 s{ST + 2}, s{SW}, 5120')
        for j in range(5):
            A(f's_mov_b32 m0, s{ST + 2}')
            if j < 4:
                A(f's_add_u32 s{ST + 2}, s{ST + 2}, 1024')
            A(f'buffer_load_dwordx4 v{AD}, s[{SIN}:{SIN + 3}], s{ST} offen lds')
            if j < 4:
                A(f's_add_u32 s{ST}, s{ST}, {32 * 3072}')
    A(f'v_and_b32 v{n_}, 15, v{lane}')
    A(f'v_lshrrev_b32 v{g_}, 4, v{lane}')
    A(f'v_lshlrev_b32 v{g4f}, 2, v{g_}')
    A(f'v_cvt_f32_u32 v{g4f}, v{g4f}')
    nf = DD + 16
    A(f'v_cvt_f32_u32 v{nf}, v{n_}')
    ARG = DD
    A(f'v_mul_f32 v{u}, {fhex(1 / 20)}, v{nf}')
    A(f'v_mul_f32 v{ARG}, v{u}, v{g4f}')
    A(f'v_add_f32 v{ARG + 1}, v{ARG}, v{u}')
    A(f'v_fma_f32 v{ARG + 2}, v{u}, 2.0, v{ARG}')
    A(f'v_fma_f32 v{ARG + 3}, v{u}, 2.0, v{ARG + 1}')
    A(f'v_mul_f32 v{ARG + 4}, 0x41800000, v{u}')
    A(f'v_add_f32 v{ARG + 5}, v{ARG + 4}, v{u}')
    A(f'v_fma_f32 v{ARG + 6}, v{u}, 2.0, v{ARG + 4}')
    A(f'v_fma_f32 v{ARG + 7}, v{u}, 2.0, v{ARG + 5}')
    trig_frag(A, C20, NS20, ARG, T, neg_sin=True)
    A(f'v_cmp_gt_u32 vcc, 16, v{lane}')
    for r in (C20 + 2, C20 + 3, NS20 + 2, NS20 + 3):
        A(f'v_cndmask_b32 v{r}, 0, v{r}, vcc')
    A(f'v_mul_f32 v{u}, {fhex(1 / 640)}, v{nf}')
    args8(A, ARG, u, g4f, T)
    for e in range(8):
        A(f'v_cos_f32 v{TC + e}, v{ARG + e}')
        A(f'v_sin_f32 v{TS + e}, v{ARG + e}')
    for e in range(8):
        A(f'v_mul_f32 v{TC + e}, {fhex(SC)}, v{TC + e}')
        A(f'v_mul_f32 v{TS + e}, {fhex(SC)}, v{TS + e}')
    A(f's_and_b32 s{ST + 4}, s{SW}, 1')
    A(f's_cmp_eq_u32 s{ST + 4}, 1')
    A(f's_cselect_b32 s{ST + 5}, 0x80008000, 0')
    A(f's_cselect_b32 s{ST + 6}, 0, 0x80008000')
    A(f's_cselect_b32 s{ST + 7}, 0.5, 0')
    A(f'v_mul_f32 v{u}, {fhex(1 / 32)}, v{nf}')
    A(f'v_add_f32 v{u}, s{ST + 7}, v{u}')
    args8(A, ARG, u, g4f, T)
    trig_frag(A, C2, S2, ARG, T)
    for h in range(4):
        A(f'v_xor_b32 v{CI + h}, s{ST + 5}, v{C2 + h}')
        A(f'v_xor_b32 v{SI + h}, s{ST + 6}, v{S2 + h}')

    if role in ('X', 'D'):
        A(f's_mul_i32 s{ST}, s{SW}, {4 * stride}')
        for j in range(5):
            A(f'v_add_u32 v{T}, {64 * j}, v{lane}')
            A(f'v_mul_u32_u24 v{T + 1}, 205, v{T}')
            A(f'v_lshrrev_b32 v{T + 1}, 14, v{T + 1}')
            A(f'v_mul_u32_u24 v{T + 1}, {stride - 1280}, v{T + 1}')
            A(f'v_lshl_add_u32 v{T}, v{T}, 4, v{T + 1}')
            A(f'v_add_u32 v{AD + j}, s{ST}, v{T}')
        for j in range(5):
            A(f's_waitcnt vmcnt({4 - j})')
            A(f'ds_write_b128 v{AD + j}, {v(AF + 4 * j, 4)}')
        for j in range(4):
            A(f's_add_u32 s{ST + 8 + j}, s{ST}, {j * stride}')
        A('s_waitcnt lgkmcnt(0)')
        if role == 'D':
            A('s_barrier')
            A(f'v_lshrrev_b32 v{T}, 2, v{lane}')
            A(f'v_and_b32 v{T}, 3, v{T}')
            A(f'v_lshl_add_u32 v{T}, v{g_}, 3, v{T}')
            A(f'v_mul_u32_u24 v{T}, {stride}, v{T}')
            A(f'v_and_b32 v{T + 1}, 3, v{lane}')
            A(f'v_mul_u32_u24 v{T + 1}, 40, v{T + 1}')
            A(f's_mul_i32 s{ST + 1}, s{SW}, 160')
            A(f'v_add3_u32 v{T}, v{T}, v{T + 1}, s{ST + 1}')
            for uu in range(5):
                A(f'ds_read_b64_tr_b16 {v(DD + 4 * uu, 2)}, v{T} offset:{8 * uu}')
                A(f'ds_read_b64_tr_b16 {v(DD + 4 * uu + 2, 2)}, v{T} offset:{8 * uu + 4 * stride}')
            srd(A, SO2, P_WS, OFF['WD2'], SZ['WD2'])
            A(f's_mul_i32 s{ST + 1}, s{SW}, {48 * 5120}')
            A(f's_mul_i32 s{ST + 2}, s{SIDX}, 5120')
            A(f's_add_u32 s{ST + 1}, s{ST + 1}, s{ST + 2}')
            A(f's_add_u32 s{ST + 2}, s{ST + 1}, 4096')
            for uu in range(5):
                A(f's_waitcnt lgkmcnt({8 - 2 * uu})')
                so = ST + 1 if uu < 4 else ST + 2
                A(f'buffer_store_dwordx4 {v(DD + 4 * uu, 4)}, v{l16}, s[{SO2}:{SO2 + 3}], s{so} offen offset:{(1024 * uu) % 4096}')
    else:
        A(f'v_lshrrev_b32 v{T}, 2, v{lane}')
        A(f'v_and_b32 v{T}, 3, v{T}')
        A(f'v_lshl_add_u32 v{T}, v{g_}, 3, v{T}')
        A(f'v_lshlrev_b32 v{T}, 5, v{T}')
        A(f'v_and_b32 v{T + 1}, 3, v{lane}')
        A(f'v_lshl_add_u32 v{T}, v{T + 1}, 3, v{T}')
        A(f's_mul_i32 s{ST}, s{SW}, 5120')
        A(f'v_add_u32 v{T}, s{ST}, v{T}')
        for j in range(5):
            A(f's_waitcnt vmcnt({4 - j})')
            A(f'ds_read_b64_tr_b16 {v(AF + 4 * j, 2)}, v{T} offset:{1024 * j}')
            A(f'ds_read_b64_tr_b16 {v(AF + 4 * j + 2, 2)}, v{T} offset:{1024 * j + 128}')
        A(f's_lshr_b32 s{ST}, s{SW}, 2')
        A(f's_mul_i32 s{ST}, s{ST}, {16 * stride}')
        A(f's_and_b32 s{ST + 1}, s{SW}, 3')
        A(f's_mul_i32 s{ST + 1}, s{ST + 1}, 320')
        A(f's_add_u32 s{ST}, s{ST}, s{ST + 1}')
        A(f'v_mul_u32_u24 v{T}, {stride}, v{n_}')
        A(f'v_lshl_add_u32 v{T}, v{g_}, 4, v{T}')
        A(f'v_add_u32 v{T}, s{ST}, v{T}')
        A('s_waitcnt lgkmcnt(0)')
        A('s_barrier')
        for j in range(5):
            A(f'ds_write_b128 v{T}, {v(AF + 4 * j, 4)} offset:{64 * j}')
        A(f's_and_b32 s{ST}, s{SW}, 1')
        A(f's_lshl_b32 s{ST}, s{ST}, 3')
        A(f's_and_b32 s{ST + 1}, s{SW}, 6')
        A(f's_add_u32 s{ST}, s{ST}, s{ST + 1}')
        A(f's_mul_i32 s{ST}, s{ST}, {stride}')
        for j in range(4):
            A(f's_add_u32 s{ST + 8 + j}, s{ST}, {(16 * (j >> 1) + (j & 1)) * stride}')
        A('s_waitcnt lgkmcnt(0)')
        A('s_barrier')

    A(f'v_lshrrev_b32 v{T}, 2, v{lane}')
    A(f'v_and_b32 v{T + 1}, 3, v{lane}')
    A(f'v_lshlrev_b32 v{T + 1}, 3, v{T + 1}')
    A(f'v_lshl_add_u32 v{T + 2}, v{T}, 6, v{T + 1}')
    A(f'v_and_b32 v{T}, 3, v{T}')
    A(f'v_lshl_add_u32 v{T + 3}, v{T}, 6, v{T + 1}')
    for j in range(4):
        A(f'v_add_u32 v{AD + 2 * j}, s{ST + 8 + j}, v{T + 2}')
        A(f'v_add_u32 v{AD + 2 * j + 1}, s{ST + 8 + j}, v{T + 3}')
    for j in range(4):
        for mt in range(2):
            A(f'ds_read_b64_tr_b16 {v(AF + 8 * j + 4 * mt, 2)}, v{AD + 2 * j} offset:{32 * mt}')
            A(f'ds_read_b64_tr_b16 {v(AF + 8 * j + 4 * mt + 2, 2)}, v{AD + 2 * j + 1} offset:{1024 + 32 * mt}')
    A(f's_and_b32 s{ST}, s{SW}, 1')
    A(f's_lshl_b32 s{ST}, s{ST}, 10')
    A(f's_lshr_b32 s{ST + 1}, s{SW}, 1')
    A(f's_lshl_b32 s{ST + 2}, s{ST + 1}, 6')
    A(f's_add_u32 s{ST}, s{ST}, s{ST + 2}')
    MW = u
    A(f'v_mul_u32_u24 v{MW}, {MID_K}, v{n_}')
    A(f'v_lshl_add_u32 v{MW}, v{g_}, 8, v{MW}')
    A(f'v_add_u32 v{MW}, s{ST}, v{MW}')
    A(f'v_cmp_gt_u32 s[{ST + 12}:{ST + 13}], 11, v{n_}')
    A('s_waitcnt lgkmcnt(0)')
    A('s_barrier')

    def s1_mfma(j):
        b = DD + 16 * (j & 1)
        for mt in range(2):
            mfma(A, v(b + 4 * mt, 4), v(AF + 8 * j + 4 * mt, 4), v(C20, 4))
            mfma(A, v(b + 8 + 4 * mt, 4), v(AF + 8 * j + 4 * mt, 4), v(NS20, 4))

    s1_mfma(0)
    for j in range(4):
        if j < 3:
            s1_mfma(j + 1)
        b = DD + 16 * (j & 1)
        cmul8(A, [b, b + 4], [b + 8, b + 12], TC, TS, AF + 8 * j, AF + 8 * j + 4, T, True)
        A(f's_mov_b64 exec, s[{ST + 12}:{ST + 13}]')
        A(f'ds_write_b128 v{MW}, {v(AF + 8 * j, 4)} offset:{16 * j}')
        A(f'ds_write_b128 v{MW}, {v(AF + 8 * j + 4, 4)} offset:{2048 + 16 * j}')
        A('s_mov_b64 exec, -1')

    CP, SIP = C20, NS20
    A(f's_cmp_eq_u32 s{SW}, 0')
    A(f's_cselect_b32 s{ST}, 0, 99')
    A(f'v_cmp_eq_u32 vcc, s{ST}, v{n_}')
    A(f'v_mov_b32 v{T}, 0xbf353f35')
    A(f'v_mov_b32 v{T + 1}, 0x3f353f35')
    for h in range(4):
        A(f'v_cndmask_b32 v{CP + h}, v{C2 + h}, v{T}, vcc')
        A(f'v_cndmask_b32 v{SIP + h}, v{SI + h}, v{T + 1}, vcc')
    if role == 'X':
        MASK = g4f
        A(f'v_cndmask_b32 v{MASK}, 1.0, 0, vcc')
    A(f's_lshr_b32 s{ST + 1}, s{SW}, 1')
    A(f's_cmp_eq_u32 s{SW}, 1')
    A(f's_cselect_b32 s{ST + 2}, 10, s{ST + 1}')
    A(f's_mul_i32 s{ST + 1}, s{ST + 1}, {MID_K}')
    A(f's_mul_i32 s{ST + 2}, s{ST + 2}, {MID_K}')
    A(f'v_add_u32 v{AD}, s{ST + 2}, v{l16}')
    A(f'v_add_u32 v{AD + 1}, s{ST + 1}, v{l16}')
    VO = AD + 2
    SOFF = ST + 14
    if role == 'X':
        srd(A, SO1, P_WS, OFF['XT'], SZ['XT'])
        A(f'v_mul_u32_u24 v{VO}, {XT_STRIDE}, v{n_}')
        A(f'v_lshl_add_u32 v{VO}, v{g_}, 4, v{VO}')
        A(f's_mul_i32 s{ST}, s{SW}, {32 * XT_STRIDE}')
        A(f's_lshl_b32 s{ST + 1}, s{SIDX}, 6')
        A(f's_add_u32 s{ST}, s{ST}, s{ST + 1}')
        for uu in range(3):
            for ri in range(2):
                A(f's_add_u32 s{SOFF + 2 * uu + ri}, s{ST}, {(256 * uu + 16 * ri) * XT_STRIDE}')
    elif role == 'D':
        srd(A, SO1, P_WS, OFF['WD1'], SZ['WD1'])
        A(f'v_mov_b32 v{VO}, v{l16}')
        A(f's_mul_i32 s{ST + 3}, s{SIDX}, 5120')
        for uu in range(3):
            for ri in range(2):
                A(f's_lshl_b32 s{ST}, s{SW}, 1')
                A(f's_add_u32 s{ST}, s{ST}, {16 * uu + ri}')
                A(f's_mul_i32 s{ST + 1}, s{ST}, 52')
                A(f's_lshr_b32 s{ST + 1}, s{ST + 1}, 8')
                A(f's_mul_i32 s{ST + 1}, s{ST + 1}, {48 * 5120 - 5 * 1024}')
                A(f's_lshl_b32 s{ST}, s{ST}, 10')
                A(f's_add_u32 s{ST}, s{ST}, s{ST + 1}')
                A(f's_add_u32 s{SOFF + 2 * uu + ri}, s{ST}, s{ST + 3}')
    else:
        srd(A, SO1, P_WS, OFF['WGU'], SZ['WGU'])
        A(f'v_mov_b32 v{VO}, v{l16}')
        for mt in range(2):
            A(f's_lshl_b32 s{ST}, s{SIDX}, 1')
            A(f's_add_u32 s{ST}, s{ST}, {mt}')
            A(f's_mul_i32 s{ST + 1}, s{ST}, 171')
            A(f's_lshr_b32 s{ST + 1}, s{ST + 1}, 9')
            A(f's_mul_i32 s{ST + 1}, s{ST + 1}, {61440 - 3 * 1024}')
            A(f's_lshl_b32 s{ST}, s{ST}, 10')
            A(f's_add_u32 s{ST}, s{ST}, s{ST + 1}')
            A(f's_mul_i32 s{ST + 1}, s{SW}, 3072')
            A(f's_add_u32 s{ST}, s{ST}, s{ST + 1}')
            for uu in range(3):
                A(f's_add_u32 s{SOFF + 2 * uu + mt}, s{ST}, {8 * 3072 * uu}')
    A('s_waitcnt lgkmcnt(0)')
    A('s_barrier')
    SSA = TC
    OUT = TS

    def rd_unit(uu):
        b = AF + 16 * (uu & 1)
        ad = AD if uu == 0 else AD + 1
        for q in range(4):
            A(f'ds_read_b128 {v(b + 4 * q, 4)}, v{ad} offset:{4 * MID_K * uu + 1024 * q}')

    def do_unit(uu):
        b = AF + 16 * (uu & 1)
        d = DD + 16 * (uu & 1)
        cre = CP if uu == 0 else C2
        sim = SIP if uu == 0 else SI
        for mt in range(2):
            br, bi = v(b + 4 * mt, 4), v(b + 8 + 4 * mt, 4)
            dr, di = v(d + 4 * mt, 4), v(d + 8 + 4 * mt, 4)
            for (dst, dat, mat, first) in ((dr, br, cre, True), (di, br, sim, True), (dr, bi, S2, False), (di, bi, CI, False)):
                if role == 'GU':
                    mfma(A, dst, v(mat, 4), dat, None if first else dst)
                else:
                    mfma(A, dst, dat, v(mat, 4), None if first else dst)

    def out_unit(uu):
        d = DD + 16 * (uu & 1)
        for hh in range(2):
            if role == 'GU':
                srcs = [d + 4 * hh, d + 4 * hh + 2, d + 8 + 4 * hh, d + 8 + 4 * hh + 2]
            else:
                srcs = [d + 8 * hh + 2 * q for q in range(4)]
            for q in range(4):
                A(f'v_cvt_pk_bf16_f32 v{OUT + 4 * hh + q}, v{srcs[q]}, v{srcs[q] + 1}')
            A(f'buffer_store_dwordx4 {v(OUT + 4 * hh, 4)}, v{VO}, s[{SO1}:{SO1 + 3}], s{SOFF + 2 * uu + hh} offen')
        if role == 'X':
            for q in range(8):
                if uu == 0:
                    A(f'v_mul_f32 v{d + 8 + q}, v{d + 8 + q}, v{MASK}')
                    A(f'v_mul_f32 v{SSA + q}, v{d + q}, v{d + q}')
                else:
                    A(f'v_fmac_f32 v{SSA + q}, v{d + q}, v{d + q}')
                A(f'v_fmac_f32 v{SSA + q}, v{d + 8 + q}, v{d + 8 + q}')

    rd_unit(0)
    rd_unit(1)
    A('s_waitcnt lgkmcnt(4)')
    do_unit(0)
    A('s_waitcnt lgkmcnt(0)')
    do_unit(1)
    lab = f'L_k1{role}_skip'
    A(f's_cmp_ge_u32 s{SW}, 4')
    A(f's_cbranch_scc1 {lab}a')
    rd_unit(2)
    A(f'{lab}a:')
    A('s_nop 4')
    out_unit(0)
    A(f's_cbranch_scc1 {lab}b')
    A('s_waitcnt lgkmcnt(0)')
    do_unit(2)
    A(f'{lab}b:')
    out_unit(1)
    A(f's_cbranch_scc1 {lab}c')
    out_unit(2)
    A(f'{lab}c:')
    if role == 'X':
        A('s_nop 1')
        for sh in (8, 4, 2, 1):
            for q in range(8):
                A(f'v_add_f32_dpp v{SSA + q}, v{SSA + q}, v{SSA + q} row_ror:{sh} row_mask:0xf bank_mask:0xf')
        A('s_barrier')
        A(f's_lshl_b32 s{ST}, s{SW}, 7')
        A(f'v_lshlrev_b32 v{T}, 5, v{g_}')
        A(f'v_add_u32 v{T}, s{ST}, v{T}')
        A(f'v_cmp_eq_u32 vcc, 0, v{n_}')
        A(f's_and_saveexec_b64 s[{ST + 2}:{ST + 3}], vcc')
        A(f'ds_write_b128 v{T}, {v(SSA, 4)}')
        A(f'ds_write_b128 v{T}, {v(SSA + 4, 4)} offset:16')
        A('s_mov_b64 exec, -1')
        A('s_waitcnt lgkmcnt(0)')
        A('s_barrier')
        A(f's_cmp_lg_u32 s{SW}, 0')
        A('s_cbranch_scc1 L_k1_end')
        A(f'v_and_b32 v{T}, 31, v{lane}')
        A(f'v_lshlrev_b32 v{T}, 2, v{T}')
        for q in range(8):
            A(f'ds_read_b32 v{DD + q}, v{T} offset:{128 * q}')
        srd(A, SO2, P_WS, OFF['SS0'], SZ['SS0'])
        A(f's_lshl_b32 s{ST}, s{SIDX}, 7')
        A('s_waitcnt lgkmcnt(0)')
        for q in range(1, 8):
            A(f'v_add_f32 v{DD}, v{DD}, v{DD + q}')
        A(f'buffer_store_dword v{DD}, v{T}, s[{SO2}:{SO2 + 3}], s{ST} offen')
    A('s_endpgm')
    return R.hi


def gen_wt_role(A):
    R = Alloc(1, 128)
    lane = R.get(); l16 = R.get(); n_ = R.get(); g_ = R.get()
    T = R.get(8, 2); ARG = R.get(4); OUT = R.get(20, 4); KA = R.get(5); VO = R.get(); RAW = R.get(16)
    CH = 5136
    A(f'v_and_b32 v{lane}, 63, v0')
    A(f'v_lshlrev_b32 v{l16}, 4, v{lane}')
    A(f's_and_b32 s{ST}, s{SIDX}, 1')
    A(f's_cmp_eq_u32 s{ST}, 0')
    A(f's_cselect_b32 s{SIN}, s{P_WR}, s{P_WI}')
    A(f's_cselect_b32 s{SIN + 1}, s{P_WR + 1}, s{P_WI + 1}')
    A(f's_mov_b32 s{SIN + 2}, {2048 * 642}')
    A(f's_mov_b32 s{SIN + 3}, 0x20000')
    A(f's_lshr_b32 s{ST + 1}, s{SIDX}, 1')
    A(f's_and_b32 s{ST + 1}, s{ST + 1}, 3')
    A(f's_lshr_b32 s{ST + 2}, s{SIDX}, 3')
    A(f's_lshl_b32 s{ST + 3}, s{ST + 1}, 2')
    A(f's_and_b32 s{ST + 4}, s{SW}, 3')
    A(f's_add_u32 s{ST + 3}, s{ST + 3}, s{ST + 4}')
    A(f's_lshr_b32 s{ST + 4}, s{SW}, 2')
    A(f's_lshl_b32 s{ST + 4}, s{ST + 4}, 4')
    A(f's_add_u32 s{ST + 3}, s{ST + 3}, s{ST + 4}')
    A(f's_lshl_b32 s{ST + 3}, s{ST + 3}, 3')
    A(f's_add_u32 s{ST + 3}, s{ST + 3}, s{ST + 2}')
    A(f's_mul_i32 s{ST + 3}, s{ST + 3}, {CH}')
    A(f's_mul_i32 s{ST + 4}, s{SW}, {CH}')
    A(f's_mov_b32 m0, s{ST + 4}')
    A(f's_add_u32 s{ST + 5}, s{ST + 3}, 4096')
    for j in range(4):
        A(f'buffer_load_dwordx4 v{l16}, s[{SIN}:{SIN + 3}], s{ST + 3} offen offset:{1024 * j} lds')
    A(f's_add_u32 s{ST + 4}, s{ST + 4}, 4096')
    A(f's_mov_b32 m0, s{ST + 4}')
    A(f'buffer_load_dwordx4 v{l16}, s[{SIN}:{SIN + 3}], s{ST + 5} offen lds')
    A('s_mov_b64 exec, 1')
    A(f'buffer_load_dwordx4 v{l16}, s[{SIN}:{SIN + 3}], s{ST + 5} offen offset:1024 lds')
    A('s_mov_b64 exec, -1')
    A(f'v_and_b32 v{n_}, 15, v{lane}')
    A(f'v_lshrrev_b32 v{g_}, 4, v{lane}')
    A(f's_lshl_b32 s{ST + 6}, s{SIDX}, 3')
    A(f's_add_u32 s{ST + 6}, s{ST + 6}, s{SW}')
    A(f's_cmp_ge_u32 s{ST + 6}, 400')
    A('s_cbranch_scc1 L_k1wt_zero')
    A(f's_mul_i32 s{ST + 7}, s{ST + 6}, 3277')
    A(f's_lshr_b32 s{ST + 7}, s{ST + 7}, 16')
    A(f's_mul_i32 s{ST + 8}, s{ST + 7}, 20')
    A(f's_sub_u32 s{ST + 8}, s{ST + 6}, s{ST + 8}')
    A(f's_lshr_b32 s{ST + 9}, s{ST + 8}, 1')
    A(f's_cmp_eq_u32 s{ST + 8}, 1')
    A(f's_cselect_b32 s{ST + 9}, 10, s{ST + 9}')
    A(f's_sub_u32 s{ST + 10}, 320, s{ST + 9}')
    A(f's_and_b32 s{ST + 11}, s{ST + 8}, 1')
    A(f's_cmp_eq_u32 s{ST + 11}, 1')
    A(f's_cselect_b32 s{ST + 9}, s{ST + 10}, s{ST + 9}')
    A(f's_cselect_b32 s{ST + 10}, -20, 20')
    A(f's_lshl_b32 s{ST + 7}, s{ST + 7}, 4')
    A(f'v_add_u32 v{T}, s{ST + 7}, v{n_}')
    A(f'v_lshlrev_b32 v{T + 1}, 2, v{g_}')
    A(f'v_mul_i32_i24 v{T + 1}, s{ST + 10}, v{T + 1}')
    A(f'v_add_u32 v{T + 1}, s{ST + 9}, v{T + 1}')
    A(f'v_cmp_eq_u32 vcc, 0, v{T + 1}')
    A(f'v_mov_b32 v{T + 2}, 320')
    A(f'v_cndmask_b32 v{T + 2}, v{T + 1}, v{T + 2}, vcc')
    A(f'v_mov_b32 v{T + 3}, {fhex(SC)}')
    A(f'v_mov_b32 v{T + 4}, {fhex(SC / math.sqrt(2))}')
    A(f'v_cndmask_b32 v{KA}, v{T + 3}, v{T + 4}, vcc')
    A(f'v_mul_u32_u24 v{ARG}, v{T}, v{T + 2}')
    for e in range(1, 4):
        A(f'v_add_u32 v{T + 1}, s{ST + 10}, v{T + 1}')
        A(f'v_mul_u32_u24 v{ARG + e}, v{T}, v{T + 1}')
    for e in range(4):
        A(f'v_cvt_f32_u32 v{ARG + e}, v{ARG + e}')
        A(f'v_mul_f32 v{ARG + e}, {fhex(1 / 640)}, v{ARG + e}')
    for e in range(4):
        A(f'v_cos_f32 v{T + e}, v{ARG + e}')
        A(f'v_sin_f32 v{T + 4 + e}, v{ARG + e}')
    A(f'v_mul_f32 v{T}, v{KA}, v{T}')
    for e in range(1, 4):
        A(f'v_mul_f32 v{T + e}, {fhex(SC)}, v{T + e}')
    for e in range(4):
        A(f'v_mul_f32 v{T + 4 + e}, {fhex(-SC)}, v{T + 4 + e}')
    for h in range(4):
        A(f'v_cvt_pk_bf16_f32 v{OUT + h}, v{T + 2 * h}, v{T + 2 * h + 1}')
    srd(A, SO2, P_WS, OFF['G'], SZ['G'])
    A(f's_lshl_b32 s{ST + 6}, s{ST + 6}, 10')
    A(f'buffer_store_dwordx4 {v(OUT, 4)}, v{l16}, s[{SO2}:{SO2 + 3}], s{ST + 6} offen')
    A('s_branch L_k1wt_main')
    A('L_k1wt_zero:')
    srd(A, SO2, P_WS, OFF['SS2'], SZ['SS2'])
    A(f's_sub_u32 s{ST + 6}, s{ST + 6}, 400')
    A(f's_lshl_b32 s{ST + 6}, s{ST + 6}, 10')
    for h in range(4):
        A(f'v_mov_b32 v{OUT + h}, 0')
    A(f'buffer_store_dwordx4 {v(OUT, 4)}, v{l16}, s[{SO2}:{SO2 + 3}], s{ST + 6} offen')
    A('L_k1wt_main:')
    A(f'v_lshrrev_b32 v{T}, 3, v0')
    A(f'v_and_b32 v{T + 1}, 15, v{T}')
    A(f'v_mul_u32_u24 v{T + 1}, 20, v{T + 1}')
    A(f's_lshr_b32 s{ST + 6}, s{SW}, 2')
    A(f'v_add_u32 v{T + 1}, s{ST + 6}, v{T + 1}')
    A(f's_bitcmp1_b32 s{SW}, 1')
    A(f's_cselect_b32 s{ST + 7}, -2, 2')
    A(f's_cselect_b32 s{ST + 8}, 640, 0')
    A(f'v_mul_i32_i24 v{T + 1}, s{ST + 7}, v{T + 1}')
    A(f'v_add_u32 v{T + 1}, s{ST + 8}, v{T + 1}')
    A(f'v_and_b32 v{T + 2}, 7, v0')
    A(f'v_mul_u32_u24 v{T + 3}, 642, v{T + 2}')
    A(f's_lshl_b32 s{ST + 7}, s{ST + 7}, 1')
    A(f'v_add_u32 v{KA + 1}, v{T + 3}, v{T + 1}')
    for it in range(1, 5):
        A(f'v_add_u32 v{KA + it}, s{ST + 7}, v{KA + max(1, it - 1)}')
    A(f's_lshr_b32 s{ST + 9}, s{SW}, 1')
    A(f's_cmp_eq_u32 s{ST + 9}, 1')
    A(f's_cselect_b32 s{ST + 9}, -20, 0')
    A(f'v_add_u32 v{T + 1}, s{ST + 9}, v{T + 1}')
    A(f'v_cmp_eq_u32 vcc, 0, v{T}')
    A(f'v_mov_b32 v{T + 4}, 640')
    A(f'v_cndmask_b32 v{T + 1}, v{T + 1}, v{T + 4}, vcc')
    A(f'v_add_u32 v{KA}, v{T + 3}, v{T + 1}')
    A(f'v_lshlrev_b32 v{VO}, 13, v{T}')
    A(f'v_lshl_add_u32 v{VO}, v{T + 2}, 4, v{VO}')
    A(f's_lshl_b32 s{ST}, s{ST}, 12')
    A(f's_lshr_b32 s{ST + 3}, s{ST + 2}, 1')
    A(f's_lshl_b32 s{ST + 3}, s{ST + 3}, 10')
    A(f's_add_u32 s{ST}, s{ST}, s{ST + 3}')
    A(f's_lshl_b32 s{ST + 1}, s{ST + 1}, 8')
    A(f's_add_u32 s{ST}, s{ST}, s{ST + 1}')
    A(f's_and_b32 s{ST + 2}, s{ST + 2}, 1')
    A(f's_lshl_b32 s{ST + 2}, s{ST + 2}, 7')
    A(f's_add_u32 s{ST}, s{ST}, s{ST + 2}')
    srd(A, SO1, P_WS, OFF['WT'], SZ['WT'])
    A('s_waitcnt vmcnt(0)')
    A('s_barrier')
    def fin(it):
        for h in range(4):
            A(f'v_lshl_or_b32 v{OUT + 4 * it + h}, v{RAW + 8 * (it & 1) + 2 * h + 1}, 16, v{RAW + 8 * (it & 1) + 2 * h}')
        A(f'buffer_store_dwordx4 {v(OUT + 4 * it, 4)}, v{VO}, s[{SO1}:{SO1 + 3}], s{ST} offen')
        A(f's_add_u32 s{ST}, s{ST}, {64 * 8192}')
    for it in range(5):
        for e in range(8):
            A(f'ds_read_u16 v{RAW + 8 * (it & 1) + e}, v{KA + it} offset:{CH * e}')
        if it >= 1:
            A('s_waitcnt lgkmcnt(8)')
            fin(it - 1)
    A('s_waitcnt lgkmcnt(0)')
    fin(4)
    A('s_endpgm')
    return R.hi


def gen_k1(A):
    A(f's_cmp_ge_u32 s2, {K1_GRID}')
    A('s_cbranch_scc1 L_k1_end')
    A('s_load_dwordx16 s[4:19], s[0:1], 0')
    A('s_load_dwordx2 s[20:21], s[0:1], 72')
    A('v_lshrrev_b32 v1, 6, v0')
    A(f'v_readfirstlane_b32 s{SW}, v1')
    A(f's_and_b32 s{ST}, s2, 7')
    A(f's_lshr_b32 s{ST + 1}, s2, 3')
    A('s_waitcnt lgkmcnt(0)')
    A(f's_cmp_ge_u32 s2, {NX}')
    A('s_cbranch_scc1 L_k1_notx')
    A(f's_lshl_b32 s{SIDX}, s{ST}, 3')
    A(f's_add_u32 s{SIDX}, s{SIDX}, s{ST + 1}')
    hi = gen_fft_role(A, 'X')
    A('L_k1_notx:')
    A(f's_cmp_ge_u32 s2, {NX + NGU}')
    A('s_cbranch_scc1 L_k1_notgu')
    A(f's_mul_i32 s{SIDX}, s{ST}, 12')
    A(f's_add_u32 s{SIDX}, s{SIDX}, s{ST + 1}')
    A(f's_sub_u32 s{SIDX}, s{SIDX}, {NX // 8}')
    hi = max(hi, gen_fft_role(A, 'GU'))
    A('L_k1_notgu:')
    A(f's_cmp_ge_u32 s2, {NX + NGU + ND}')
    A('s_cbranch_scc1 L_k1_notd')
    A(f's_sub_u32 s{SIDX}, s2, {NX + NGU}')
    hi = max(hi, gen_fft_role(A, 'D'))
    A('L_k1_notd:')
    A(f's_sub_u32 s{SIDX}, s2, {NX + NGU + ND}')
    hi = max(hi, gen_wt_role(A))
    A('L_k1_end:')
    A('s_endpgm')
    return dict(grid=K1_GRID, block=512, lds=K1_LDS, vgpr=hi, agpr=0, sgpr=64)
```

```python
from asmlib import *
from layout import *
from k1 import srd, args8, trig_frag, cmul8, mfma

K2_LDS = 2 * 32 * 144
P_WS = 4
SW = 6
SC_ = 7
SXT, SSS, SWT, SXB = 8, 12, 16, 20
ST = 24


def gen_k2(A, name, ssname):
    R = Alloc(1, 256)
    lane = R.get(); n_ = R.get(); g_ = R.get(); g4f = R.get(); u = R.get(); nf = R.get()
    XR = R.get(4, 4); XI = R.get(4, 4); SS = R.get(8, 4); WR = R.get(4, 4); WI = R.get(4, 4)
    C1 = R.get(8, 4); S1 = R.get(8, 4); N1 = R.get(8, 4)
    C2 = R.get(8, 4); S2 = R.get(8, 4); N2 = R.get(8, 4)
    TC = R.get(8, 2); TS = R.get(8, 2); UC = R.get(8, 2); US = R.get(8, 2)
    AF = R.get(32, 4); DD = R.get(16, 4); BF = R.get(8, 4)
    XF = R.get(16, 2); WF = R.get(16, 2)
    T = R.get(4, 2); AD = R.get(6)
    ARG = DD
    A(f's_cmp_ge_u32 s2, 320')
    A(f's_cbranch_scc1 L_{name}_end')
    A(f's_load_dwordx2 s[{P_WS}:{P_WS + 1}], s[0:1], 72')
    A(f'v_lshrrev_b32 v1, 6, v0')
    A(f'v_readfirstlane_b32 s{SW}, v1')
    A(f'v_and_b32 v{lane}, 63, v0')
    A(f'v_and_b32 v{n_}, 15, v{lane}')
    A(f'v_lshrrev_b32 v{g_}, 4, v{lane}')
    A(f's_mov_b32 s{SC_}, s2')
    A(f's_lshr_b32 s{ST}, s{SC_}, 4')
    A(f's_lshl_b32 s{ST}, s{ST}, 5')
    A(f's_and_b32 s{ST + 1}, s{SC_}, 15')
    A(f's_add_u32 s{ST}, s{ST}, s{ST + 1}')
    A(f's_mul_i32 s{ST + 1}, s{ST}, {XT_STRIDE}')
    A(f's_lshl_b32 s{ST + 2}, s{SW}, 10')
    A(f's_add_u32 s{ST + 1}, s{ST + 1}, s{ST + 2}')
    A(f's_add_u32 s{ST + 3}, s{ST + 1}, {16 * XT_STRIDE}')
    A(f's_lshl_b32 s{ST + 4}, s{SW}, 11')
    A(f's_lshl_b32 s{ST + 5}, s{SC_}, 13')
    A(f's_add_u32 s{ST + 5}, s{ST + 5}, s{ST + 2}')
    A(f's_add_u32 s{ST + 6}, s{ST + 5}, 4096')
    A(f'v_lshlrev_b32 v{AD}, 6, v{n_}')
    A(f'v_lshl_add_u32 v{AD}, v{g_}, 4, v{AD}')
    A(f'v_lshlrev_b32 v{AD + 1}, 1, v{AD}')
    A(f'v_lshlrev_b32 v{AD + 2}, 4, v{lane}')
    A('s_waitcnt lgkmcnt(0)')
    srd(A, SSS, P_WS, OFF[ssname], SZ[ssname])
    A(f'buffer_load_dwordx4 {v(SS, 4)}, v{AD + 1}, s[{SSS}:{SSS + 3}], s{ST + 4} offen')
    A(f'buffer_load_dwordx4 {v(SS + 4, 4)}, v{AD + 1}, s[{SSS}:{SSS + 3}], s{ST + 4} offen offset:16')
    srd(A, SXT, P_WS, OFF['XT'], SZ['XT'])
    A(f'buffer_load_dwordx4 {v(XR, 4)}, v{AD}, s[{SXT}:{SXT + 3}], s{ST + 1} offen')
    A(f'buffer_load_dwordx4 {v(XI, 4)}, v{AD}, s[{SXT}:{SXT + 3}], s{ST + 3} offen')
    srd(A, SWT, P_WS, OFF['WT'], SZ['WT'])
    A(f'buffer_load_dwordx4 {v(WR, 4)}, v{AD + 2}, s[{SWT}:{SWT + 3}], s{ST + 5} offen')
    A(f'buffer_load_dwordx4 {v(WI, 4)}, v{AD + 2}, s[{SWT}:{SWT + 3}], s{ST + 6} offen')
    srd(A, SXB, P_WS, OFF['XB'], SZ['XB'])
    A(f'v_lshlrev_b32 v{g4f}, 2, v{g_}')
    A(f'v_cvt_f32_u32 v{g4f}, v{g4f}')
    A(f'v_cvt_f32_u32 v{nf}, v{n_}')
    A(f's_lshl_b32 s{ST + 7}, s{SW}, 4')
    A(f'v_add_u32 v{T}, s{ST + 7}, v{n_}')
    qf = BF
    A(f'v_cvt_f32_u32 v{qf}, v{T}')
    A(f's_mov_b32 s{ST + 8}, 0x80008000')
    A(f'v_mul_f32 v{u}, {fhex(1 / 64)}, v{qf}')
    args8(A, ARG, u, g4f, T)
    trig_frag(A, C1, S1, ARG, T)
    A(f'v_mul_f32 v{T}, 0.5, v{qf}')
    for e in range(8):
        A(f'v_add_f32 v{ARG + e}, v{ARG + e}, v{T}')
    trig_frag(A, C1 + 4, S1 + 4, ARG, T)
    for h in range(8):
        A(f'v_xor_b32 v{N1 + h}, s{ST + 8}, v{S1 + h}')
    A(f'v_mul_f32 v{u}, {fhex(1 / 2048)}, v{qf}')
    args8(A, ARG, u, g4f, T)
    for e in range(8):
        A(f'v_cos_f32 v{TC + e}, v{ARG + e}')
        A(f'v_sin_f32 v{TS + e}, v{ARG + e}')
    A(f'v_lshrrev_b32 v{T}, 1, v{n_}')
    A(f'v_and_b32 v{T}, 2, v{T}')
    A(f'v_xor_b32 v{T}, v{T}, v{g_}')
    A(f'v_lshlrev_b32 v{T}, 4, v{T}')
    A(f'v_lshl_add_u32 v{T}, v{n_}, 6, v{T}')
    A(f'v_add_u32 v{AD + 3}, s{ST + 2}, v{T}')
    A(f'v_lshrrev_b32 v{T}, 2, v{lane}')
    A(f'v_lshlrev_b32 v{T}, 6, v{T}')
    A(f'v_and_b32 v{T + 1}, 3, v{lane}')
    A(f'v_lshl_add_u32 v{T}, v{T + 1}, 3, v{T}')
    A(f'v_and_b32 v{T + 1}, 1, v{g_}')
    A(f'v_lshl_add_u32 v{AD + 4}, v{T + 1}, 5, v{T}')
    A(f'v_xor_b32 v{AD + 5}, 32, v{AD + 4}')
    A('s_waitcnt vmcnt(4)')
    A(f'v_mov_b32 v{T}, {fhex(1e-5 * 2048.0 * 2048.0)}')
    A(f's_mov_b32 s{ST + 9}, {fhex(2048.0 * 2048.0 / 640.0)}')
    for e in range(8):
        A(f'v_fma_f32 v{SS + e}, v{SS + e}, s{ST + 9}, v{T}')
    for e in range(8):
        A(f'v_rsq_f32 v{SS + e}, v{SS + e}')
    A(f's_cmp_eq_u32 s{SC_}, 0')
    A(f's_cselect_b32 s{ST + 10}, 0, -1')
    A('s_waitcnt vmcnt(2)')
    for (src, o) in ((XR, 0), (XI, 8)):
        for h in range(4):
            A(f'v_lshlrev_b32 v{XF + o + 2 * h}, 16, v{src + h}')
            A(f'v_and_b32 v{XF + o + 2 * h + 1}, 0xffff0000, v{src + h}')
    for o in (0, 8):
        for h in range(4):
            A(f'v_pk_mul_f32 {v(T, 2)}, {v(XF + o + 2 * h, 2)}, {v(SS + 2 * h, 2)}')
            A(f'v_cvt_pk_bf16_f32 v{BF + o // 2 + h}, v{T}, v{T + 1}')
    for h in range(4):
        A(f'v_and_b32 v{BF + 4 + h}, s{ST + 10}, v{BF + 4 + h}')
    A(f'ds_write_b128 v{AD + 3}, {v(BF, 4)}')
    A(f'ds_write_b128 v{AD + 3}, {v(BF + 4, 4)} offset:4096')
    for t in range(2):
        A(f'v_mul_f32 v{u}, {fhex(1 / 32)}, v{nf}')
        if t:
            A(f'v_add_f32 v{u}, 0.5, v{u}')
        args8(A, ARG, u, g4f, T)
        if t == 0:
            A('s_waitcnt lgkmcnt(0)')
            A('s_barrier')
            for kk in range(2):
                for ri in range(2):
                    for mt in range(2):
                        b = AF + 16 * ri + 8 * kk + 4 * mt
                        A(f'ds_read_b64_tr_b16 {v(b, 2)}, v{AD + 4 + mt} offset:{4096 * ri + 2048 * kk}')
                        A(f'ds_read_b64_tr_b16 {v(b + 2, 2)}, v{AD + 4 + mt} offset:{4096 * ri + 2048 * kk + 1024}')
        trig_frag(A, C2 + 4 * t, S2 + 4 * t, ARG, T)
    for h in range(8):
        A(f'v_xor_b32 v{N2 + h}, s{ST + 8}, v{S2 + h}')
    A('s_waitcnt lgkmcnt(0)')
    A('s_barrier')
    for kk in range(2):
        for mt in range(2):
            xr, xi = v(AF + 8 * kk + 4 * mt, 4), v(AF + 16 + 8 * kk + 4 * mt, 4)
            dr, di = v(DD + 4 * mt, 4), v(DD + 8 + 4 * mt, 4)
            mfma(A, dr, xr, v(C1 + 4 * kk, 4), dr if kk else None)
            mfma(A, di, xi, v(C1 + 4 * kk, 4), di if kk else None)
            mfma(A, dr, xi, v(S1 + 4 * kk, 4), dr)
            mfma(A, di, xr, v(N1 + 4 * kk, 4), di)
    A(f'v_cvt_f32_u32 v{T}, s{ST + 7}')
    A(f'v_add_f32 v{T}, v{T}, v{g4f}')
    for uu in range(2):
        A(f'v_mul_f32 v{u}, {fhex(1 / 2048)}, v{nf}')
        if uu:
            A(f'v_add_f32 v{u}, {fhex(16 / 2048)}, v{u}')
        b = WF + 4 * uu
        A(f'v_mul_f32 v{b}, v{u}, v{T}')
        A(f'v_add_f32 v{b + 1}, v{b}, v{u}')
        A(f'v_fma_f32 v{b + 2}, v{u}, 2.0, v{b}')
        A(f'v_fma_f32 v{b + 3}, v{u}, 2.0, v{b + 1}')
    for e in range(8):
        A(f'v_cos_f32 v{UC + e}, v{WF + e}')
        A(f'v_sin_f32 v{US + e}, v{WF + e}')
    cmul8(A, [DD, DD + 4], [DD + 8, DD + 12], TC, TS, BF, BF + 4, T, True)
    for t in range(2):
        dr, di = v(DD + 4 * t, 4), v(DD + 8 + 4 * t, 4)
        mfma(A, dr, v(C2 + 4 * t, 4), v(BF, 4))
        mfma(A, di, v(C2 + 4 * t, 4), v(BF + 4, 4))
        mfma(A, dr, v(S2 + 4 * t, 4), v(BF + 4, 4), dr)
        mfma(A, di, v(N2 + 4 * t, 4), v(BF, 4), di)
    A('s_waitcnt vmcnt(0)')
    for (src, o) in ((WR, 0), (WI, 8)):
        for h in range(4):
            A(f'v_lshlrev_b32 v{WF + o + 2 * h}, 16, v{src + h}')
            A(f'v_and_b32 v{WF + o + 2 * h + 1}, 0xffff0000, v{src + h}')
    cmul8(A, [DD, DD + 4], [DD + 8, DD + 12], WF, WF + 8, BF, BF + 4, T, False)
    for uu in range(2):
        dr, di = v(DD + 4 * uu, 4), v(DD + 8 + 4 * uu, 4)
        mfma(A, dr, v(BF, 4), v(C2 + 4 * uu, 4))
        mfma(A, di, v(BF + 4, 4), v(C2 + 4 * uu, 4))
        mfma(A, dr, v(BF + 4, 4), v(N2 + 4 * uu, 4), dr)
        mfma(A, di, v(BF, 4), v(S2 + 4 * uu, 4), di)
    A(f's_lshr_b32 s{ST + 11}, s{SW}, 1')
    A(f's_lshl_b32 s{ST + 11}, s{ST + 11}, 6')
    A(f's_and_b32 s{ST + 12}, s{SW}, 1')
    A(f's_lshl_b32 s{ST + 12}, s{ST + 12}, 3')
    A(f's_add_u32 s{ST + 11}, s{ST + 11}, s{ST + 12}')
    A(f'v_mul_u32_u24 v{AD + 3}, 144, v{n_}')
    A(f'v_lshl_add_u32 v{AD + 3}, v{g_}, 4, v{AD + 3}')
    A(f'v_add_u32 v{AD + 3}, s{ST + 11}, v{AD + 3}')
    A(f'v_and_b32 v{T}, 12, v{n_}')
    A(f'v_add_u32 v{T}, v{T}, v{n_}')
    A(f'v_mul_u32_u24 v{T}, 144, v{T}')
    A(f'v_lshl_add_u32 v{AD + 4}, v{g_}, 4, v{T}')
    cmul8(A, [DD, DD + 4], [DD + 8, DD + 12], UC, US, BF, BF + 4, T, False)
    for ri in range(2):
        for uu in range(2):
            A(f'ds_write_b64 v{AD + 3}, {v(BF + 4 * ri + 2 * uu, 2)} offset:{32 * 144 * ri + 16 * 144 * uu}')
    A(f'v_lshrrev_b32 v{T}, 2, v{n_}')
    A(f'v_mul_u32_u24 v{T}, {641 * 256}, v{T}')
    A(f'v_and_b32 v{T + 1}, 3, v{n_}')
    A(f'v_lshl_add_u32 v{T + 1}, v{T + 1}, 2, v{g_}')
    A(f's_and_b32 s{ST + 11}, s{ST}, 7')
    A(f's_lshl_b32 s{ST + 11}, s{ST + 11}, 1')
    A(f'v_xor_b32 v{T + 1}, s{ST + 11}, v{T + 1}')
    A(f'v_lshl_add_u32 v{AD + 5}, v{T + 1}, 4, v{T}')
    A(f's_mul_i32 s{ST + 11}, s{SW}, {4 * 641 * 256}')
    A(f's_lshl_b32 s{ST + 12}, s{ST}, 8')
    A(f's_add_u32 s{ST + 12}, s{ST + 12}, s{ST + 11}')
    A(f's_add_u32 s{ST + 13}, s{ST + 12}, 4096')
    A(f's_add_u32 s{ST + 14}, s{ST + 11}, {640 * 256}')
    A('s_waitcnt lgkmcnt(0)')
    A('s_barrier')
    for kk in range(2):
        for mt in range(2):
            for ri in range(2):
                A(f'ds_read_b128 {v(AF + 16 * ri + 8 * kk + 4 * mt, 4)}, v{AD + 4} offset:{32 * 144 * ri + 4 * 144 * mt + 64 * kk}')
    for kk in range(2):
        for mt in range(2):
            A(f's_waitcnt lgkmcnt({6 - 4 * kk - 2 * mt})')
            br, bi = v(AF + 8 * kk + 4 * mt, 4), v(AF + 16 + 8 * kk + 4 * mt, 4)
            dr, di = v(DD + 4 * mt, 4), v(DD + 8 + 4 * mt, 4)
            mfma(A, dr, br, v(C1 + 4 * kk, 4), dr if kk else v(XF + 4 * mt, 4))
            mfma(A, di, bi, v(C1 + 4 * kk, 4), di if kk else v(XF + 8 + 4 * mt, 4))
            mfma(A, dr, bi, v(N1 + 4 * kk, 4), dr)
            mfma(A, di, br, v(S1 + 4 * kk, 4), di)
    for h in range(8):
        A(f'v_cvt_pk_bf16_f32 v{BF + h}, v{DD + 2 * h}, v{DD + 2 * h + 1}')
    A(f'buffer_store_dwordx4 {v(BF, 4)}, v{AD + 5}, s[{SXB}:{SXB + 3}], s{ST + 12} offen')
    for h in range(4):
        A(f'v_and_b32 v{BF + 4 + h}, s{ST + 10}, v{BF + 4 + h}')
    A(f'buffer_store_dwordx4 {v(BF + 4, 4)}, v{AD + 5}, s[{SXB}:{SXB + 3}], s{ST + 13} offen')
    A(f's_cmp_lg_u32 s{SC_}, 0')
    A(f's_cbranch_scc1 L_{name}_end')
    A(f'buffer_store_dwordx4 {v(XI, 4)}, v{AD + 5}, s[{SXB}:{SXB + 3}], s{ST + 14} offen')
    A(f'L_{name}_end:')
    A('s_endpgm')
    return dict(grid=320, block=256, lds=K2_LDS, vgpr=R.hi, agpr=0, sgpr=48)
```

```python
from asmlib import *
from layout import *
from k1 import srd, mfma
import math

K3_LDS = 163840
P_WS = 4
SW = 6
SRB, SCB, SROT, SRW = 7, 8, 9, 10
SJOB = 11
SXB, SWG, SH, SG, SP, SX3 = 12, 16, 20, 24, 28, 32
SXO = 36
SWO = 46
SGO = 56
ST = 66


def gen_k3(A, name, final, xr=4, pre=3):
    R = Alloc(1, 256)
    lane = R.get(); n_ = R.get(); g_ = R.get(); l16 = R.get(); l16b = R.get()
    ACC = R.get(96, 4)
    XF = R.get(64, 4)
    SA = R.get(12, 4)
    AD = R.get(8)
    T = R.get(4, 2)
    if final:
        EO = R.get(24, 4)
        GD = 4
        GF = R.get(8 * GD, 4)
        DC = R.get(3)
    A(f's_cmp_ge_u32 s2, 256')
    A(f's_cbranch_scc1 L_{name}_end')
    A(f's_load_dwordx2 s[{P_WS}:{P_WS + 1}], s[0:1], 72')
    A(f'v_lshrrev_b32 v1, 6, v0')
    A(f'v_readfirstlane_b32 s{SW}, v1')
    A(f'v_and_b32 v{lane}, 63, v0')
    A(f'v_lshlrev_b32 v{l16}, 4, v{lane}')
    A(f'v_add_u32 v{l16b}, 3072, v{l16}')
    xc = 8 // xr
    nrb, ncb = 16 // xr, 16 // xc
    A(f's_and_b32 s{ST}, s2, 7')
    A(f's_lshr_b32 s{ST + 1}, s2, 3')
    A(f's_lshr_b32 s{ST + 2}, s{ST}, {int(math.log2(xc))}')
    A(f's_lshl_b32 s{ST + 2}, s{ST + 2}, {int(math.log2(nrb))}')
    A(f's_and_b32 s{ST + 3}, s{ST + 1}, {nrb - 1}')
    A(f's_add_u32 s{SRB}, s{ST + 2}, s{ST + 3}')
    A(f's_and_b32 s{ST + 2}, s{ST}, {xc - 1}')
    A(f's_lshl_b32 s{ST + 2}, s{ST + 2}, {int(math.log2(ncb))}')
    A(f's_lshr_b32 s{ST + 3}, s{ST + 1}, {int(math.log2(nrb))}')
    A(f's_add_u32 s{SCB}, s{ST + 2}, s{ST + 3}')
    A(f's_sub_u32 s{SROT}, s{SCB}, 10')
    A(f's_cmp_ge_u32 s{SCB}, 10')
    A(f's_cselect_b32 s{SROT}, s{SROT}, s{SCB}')
    A(f's_lshl_b32 s{ST}, s{SCB}, 2')
    A(f's_add_u32 s{ST}, s{ST}, s{SW}')
    A(f's_mul_i32 s{SJOB}, s{ST}, 171')
    A(f's_lshr_b32 s{SJOB}, s{SJOB}, 9')
    A(f's_mul_i32 s{ST + 1}, s{SJOB}, 3')
    A(f's_sub_u32 s{ST + 1}, s{ST}, s{ST + 1}')
    A(f's_mul_i32 s{SRW}, s{ST + 1}, 3')
    A(f's_mul_i32 s{ST + 2}, s{SRB}, {641 * 256}')
    A(f's_lshl_b32 s{ST + 3}, s{SW}, 12')
    A(f's_add_u32 s{ST + 2}, s{ST + 2}, s{ST + 3}')
    A(f's_mul_i32 s{ST + 4}, s{ST}, 61440')
    A(f's_mul_i32 s{ST + 5}, s{SJOB}, 20480')
    A(f's_mov_b32 s{ST + 6}, s{SROT}')

    def chunk_off(c):
        A(f's_lshl_b32 s{ST + 7}, s{ST + 6}, 14')
        A(f's_add_u32 s{SXO + c}, s{ST + 7}, s{ST + 2}')
        A(f's_mul_i32 s{ST + 7}, s{ST + 6}, 6144')
        A(f's_add_u32 s{SWO + c}, s{ST + 7}, s{ST + 4}')
        if final:
            A(f's_lshl_b32 s{ST + 7}, s{ST + 6}, 11')
            A(f's_add_u32 s{SGO + c}, s{ST + 7}, s{ST + 5}')
        if c < 9:
            A(f's_add_u32 s{ST + 6}, s{ST + 6}, 1')
            A(f's_cmp_eq_u32 s{ST + 6}, 10')
            A(f's_cselect_b32 s{ST + 6}, 0, s{ST + 6}')

    chunk_off(0)
    A('s_waitcnt lgkmcnt(0)')
    srd(A, SXB, P_WS, OFF['XB'], SZ['XB'])
    srd(A, SWG, P_WS, OFF['WGU'], SZ['WGU'])
    if final:
        srd(A, SG, P_WS, OFF['G'], SZ['G'])

    def chunk_ops(c):
        ops = []
        for j in range(4):
            l = []
            if j == 0:
                l.append(f's_add_u32 m0, s{ST + 3}, {16384 * c}')
            l.append(f'buffer_load_dwordx4 v{l16}, s[{SXB}:{SXB + 3}], s{SXO + c} offen offset:{1024 * j} lds')
            ops.append((('x', c), l))
        for st in range(2):
            for i in range(3):
                ks = 2 * c + st
                ops.append((('w', ks), [f'buffer_load_dwordx4 {a(12 * ks + 4 * i, 4)}, v{l16b if st else l16}, s[{SWG}:{SWG + 3}], s{SWO + c} offen offset:{1024 * i}']))
            if final:
                ops.append((('w', 2 * c + st), [f'buffer_load_dwordx4 {v(GF + 8 * (c % GD) + 4 * st, 4)}, v{l16}, s[{SG}:{SG + 3}], s{SGO + c} offen offset:{1024 * st}']))
        return ops

    issued = []

    def issue(op):
        for l in op[1]:
            A(l)
        issued.append(op[0])

    def wait_for(tag):
        last = max(i for i, t in enumerate(issued) if t == tag)
        n = len(issued) - 1 - last
        assert n <= 63
        A(f's_waitcnt vmcnt({n})')

    for c in range(pre):
        if c:
            chunk_off(c)
        for op in chunk_ops(c):
            issue(op)
    for c in range(pre, 10):
        chunk_off(c)
    A(f'v_and_b32 v{n_}, 15, v{lane}')
    A(f'v_lshrrev_b32 v{g_}, 4, v{lane}')
    A(f'v_lshrrev_b32 v{T}, 2, v{lane}')
    A(f'v_and_b32 v{T + 1}, 7, v{T}')
    A(f'v_lshlrev_b32 v{T}, 8, v{T}')
    A(f'v_and_b32 v{T + 2}, 3, v{lane}')
    A(f'v_lshl_add_u32 v{T}, v{T + 2}, 3, v{T}')
    for t in range(8):
        A(f's_add_u32 s{ST + 7}, s{SRW}, {t}')
        A(f's_and_b32 s{ST + 7}, s{ST + 7}, 7')
        A(f'v_xor_b32 v{T + 2}, s{ST + 7}, v{T + 1}')
        A(f'v_lshl_add_u32 v{AD + t}, v{T + 2}, 5, v{T}')
    if final:
        A(f's_mul_i32 s{ST + 8}, s{SRB}, {641 * 256}')
        A(f's_add_u32 s{ST + 8}, s{ST + 8}, {640 * 256}')
        for t in range(3):
            A(f's_add_u32 s{ST + 7}, s{SRW}, {t}')
            A(f's_and_b32 s{ST + 7}, s{ST + 7}, 7')
            A(f's_lshl_b32 s{ST + 7}, s{ST + 7}, 5')
            A(f'v_lshl_add_u32 v{T}, v{n_}, 1, s{ST + 7}')
            issue((('dc', 0), [f'buffer_load_ushort v{DC + t}, v{T}, s[{SXB}:{SXB + 3}], s{ST + 8} offen']))

    def xreads(ks, t):
        off = (8192 * ks) % 65536
        b = XF + 32 * (ks & 1) + 4 * t
        return [f'ds_read_b64_tr_b16 {v(b, 2)}, v{AD + t} offset:{off}',
                f'ds_read_b64_tr_b16 {v(b + 2, 2)}, v{AD + t} offset:{off + 4096}']

    wait_for(('x', 0))
    A('s_barrier')
    for t in range(8):
        for l in xreads(0, t):
            A(l)
    pend = []
    for ks in range(20):
        c = ks >> 1
        if ks % 2 == 0 and c + pre < 10:
            pend = chunk_ops(c + pre)
        nvm = (len(pend) + 1) // 2 if ks % 2 == 0 else len(pend)
        wait_for(('w', ks))
        if ks % 2 == 1 and ks < 19:
            wait_for(('x', c + 1))
            A('s_barrier')
        for t in range(8):
            nxt = ks + 1 < 20
            n_after = 2 * (7 - t) + (2 * t if nxt else 0)
            A(f's_waitcnt lgkmcnt({n_after})')
            xf = v(XF + 32 * (ks & 1) + 4 * t, 4)
            fill = []
            if nxt:
                if (ks + 1) % 8 == 0:
                    fill.append(f'v_add_u32 v{AD + t}, 0x10000, v{AD + t}')
                fill += xreads(ks + 1, t)
            ms = []
            for i in range(3):
                d = v(ACC + 12 * t + 4 * i, 4)
                ms.append((d, a(12 * ks + 4 * i, 4), xf, d if ks else None))
            if c == 0 and t < 3:
                d = v(SA + 4 * t, 4)
                ms.append((d, xf, xf, d if ks else None))
            if final and t < 3:
                d = v(EO + 12 * (c & 1) + 4 * t, 4)
                ms.append((d, v(GF + 8 * (c % GD) + 4 * (ks & 1), 4), xf, d if ks & 1 or c >= 2 else None))
            for i, m in enumerate(ms):
                mfma(A, *m)
                if i == 0:
                    for l in fill[:-1]:
                        A(l)
                elif i == 1:
                    for l in fill[-1:]:
                        A(l)
                elif i == 2 and nvm > 0 and (t >= 3 or not final or True):
                    issue(pend.pop(0))
                    nvm -= 1
        assert nvm == 0
    srd(A, SH, P_WS, OFF['H'], SZ['H'])
    HP = XF
    for t in range(8):
        for i in range(3):
            b = ACC + 12 * t + 4 * i
            A(f'v_max_f32 v{b}, 0, v{b}')
            A(f'v_max_f32 v{b + 1}, 0, v{b + 1}')
            A(f'v_pk_mul_f32 {v(b, 2)}, {v(b, 2)}, {v(b + 2, 2)}')
            A(f'v_cvt_pk_bf16_f32 v{HP + 8 * i + t}, v{b}, v{b + 1}')
    for half in range(2):
        A(f'v_add_u32 v{T}, s{SRW}, v{g_}')
        if half:
            A(f'v_add_u32 v{T}, 4, v{T}')
        A(f'v_and_b32 v{T}, 7, v{T}')
        A(f'v_mul_u32_u24 v{T}, {48 * 1024}, v{T}')
        A(f'v_lshl_add_u32 v{AD + half}, v{n_}, 4, v{T}')
    A(f's_mul_i32 s{ST + 7}, s{SRB}, {8 * 48 * 1024}')
    A(f's_mul_i32 s{ST + 8}, s{ST}, 768')
    A(f's_add_u32 s{ST + 7}, s{ST + 7}, s{ST + 8}')
    for i in range(3):
        for half in range(2):
            b = HP + 8 * i + 4 * half
            A(f'v_permlane32_swap_b32 v{b}, v{b + 2}')
            A(f'v_permlane32_swap_b32 v{b + 1}, v{b + 3}')
            A(f'v_permlane16_swap_b32 v{b}, v{b + 1}')
            A(f'v_permlane16_swap_b32 v{b + 2}, v{b + 3}')
            A(f'buffer_store_dwordx4 {v(b, 4)}, v{AD + half}, s[{SH}:{SH + 3}], s{ST + 7} offen offset:{256 * i}')
    srd(A, SP, P_WS, OFF['SSP'], SZ['SSP'])
    A(f'v_and_b32 v{T}, 3, v{n_}')
    A(f's_cmp_lt_u32 s{SCB}, 10')
    A(f's_cselect_b32 s{ST + 9}, -1, 0')
    for t in range(3):
        for i in range(1, 4):
            A(f'v_cmp_eq_u32 vcc, {i}, v{T}')
            A(f'v_cndmask_b32 v{SA + 4 * t}, v{SA + 4 * t}, v{SA + 4 * t + i}, vcc')
        A(f'v_and_b32 v{SA + 4 * t}, s{ST + 9}, v{SA + 4 * t}')
    rs, cs = (6, 2) if final else (2, 13)
    A(f'v_lshrrev_b32 v{T + 1}, 2, v{n_}')
    A(f'v_cmp_eq_u32 vcc, v{T + 1}, v{g_}')
    A(f's_lshl_b32 s{ST + 8}, s{SRB}, {7 + rs}')
    A(f's_lshl_b32 s{ST + 9}, s{SCB}, {cs}')
    A(f's_add_u32 s{ST + 8}, s{ST + 8}, s{ST + 9}')
    A(f'v_lshlrev_b32 v{T}, {rs}, v{n_}')
    A(f's_and_saveexec_b64 s[{ST + 10}:{ST + 11}], vcc')
    for t in range(3):
        A(f's_add_u32 s{ST + 7}, s{SRW}, {t}')
        A(f's_and_b32 s{ST + 7}, s{ST + 7}, 7')
        A(f's_lshl_b32 s{ST + 7}, s{ST + 7}, {4 + rs}')
        A(f's_add_u32 s{ST + 7}, s{ST + 7}, s{ST + 8}')
        A(f'buffer_store_dword v{SA + 4 * t}, v{T}, s[{SP}:{SP + 3}], s{ST + 7} offen')
    A('s_mov_b64 exec, -1')
    if final:
        A(f's_cmp_ge_u32 s{SJOB}, 20')
        A(f's_cbranch_scc1 L_{name}_end')
        srd(A, SX3, P_WS, OFF['X3'], SZ['X3'])
        A(f's_and_b32 s{ST + 9}, s{SROT}, 1')
        A(f's_cmp_eq_u32 s{ST + 9}, 1')
        A(f's_cselect_b32 s{ST + 9}, -1.0, 1.0')
        A(f'v_mul_u32_u24 v{AD}, 1280, v{n_}')
        A(f'v_lshl_add_u32 v{AD}, v{g_}, 3, v{AD}')
        A(f's_mul_i32 s{ST + 8}, s{SRB}, {128 * 1280}')
        A(f's_lshl_b32 s{ST + 10}, s{SJOB}, 5')
        A(f's_add_u32 s{ST + 8}, s{ST + 8}, s{ST + 10}')
        for t in range(3):
            if t == 2:
                A(f's_cmp_eq_u32 s{SRW}, 6')
                A(f's_cbranch_scc1 L_{name}_end')
            A(f'v_lshlrev_b32 v{DC + t}, 16, v{DC + t}')
            A(f'v_mul_f32 v{DC + t}, {fhex(1 / math.sqrt(640))}, v{DC + t}')
            ea, eb = EO + 4 * t, EO + 12 + 4 * t
            o = ACC + 8 * t
            for i in range(4):
                A(f'v_sub_f32 v{o + 4 + i}, v{ea + i}, v{eb + i}')
                A(f'v_add_f32 v{o + i}, v{ea + i}, v{eb + i}')
                A(f'v_fma_f32 v{o + 4 + i}, v{o + 4 + i}, s{ST + 9}, v{DC + t}')
                A(f'v_add_f32 v{o + i}, v{o + i}, v{DC + t}')
            for h in range(4):
                A(f'v_cvt_pk_bf16_f32 v{ea + h}, v{o + 2 * h}, v{o + 2 * h + 1}')
            A(f's_add_u32 s{ST + 7}, s{SRW}, {t}')
            A(f's_mul_i32 s{ST + 7}, s{ST + 7}, {16 * 1280}')
            A(f's_add_u32 s{ST + 7}, s{ST + 7}, s{ST + 8}')
            A(f'buffer_store_dwordx2 {v(ea, 2)}, v{AD}, s[{SX3}:{SX3 + 3}], s{ST + 7} offen')
            A(f'buffer_store_dwordx2 {v(ea + 2, 2)}, v{AD}, s[{SX3}:{SX3 + 3}], s{ST + 7} offen offset:640')
    A(f'L_{name}_end:')
    A('s_endpgm')
    return dict(grid=256, block=256, lds=K3_LDS, vgpr=R.hi, agpr=240, sgpr=96)
```

```python
from asmlib import *
from layout import *
from k1 import srd, mfma
import math

K4_LDS = 4 * 15360
P_WS, P_OUT = 4, 6
SW = 8
SRG, SCB = 9, 10
SH, SWD, SR, SP, SO, SA2 = 12, 16, 20, 24, 28, 32
SHO = 36
SWO = 40
ST = 56


def gen_k4(A, name, final, xr=4, depth=7):
    R = Alloc(1, 256)
    lane = R.get(); n_ = R.get(); g_ = R.get(); L = R.get(3)
    ACC = R.get(80, 4)
    HD = depth + 1
    HF = R.get(16 * HD, 4)
    RES = R.get(12, 4)
    SSV = R.get(4, 4)
    AD = R.get(6)
    T = R.get(4, 2)
    A(f's_cmp_ge_u32 s2, 256')
    A(f's_cbranch_scc1 L_{name}_end')
    A(f's_load_dwordx2 s[{P_WS}:{P_WS + 1}], s[0:1], 72')
    if final:
        A(f's_load_dwordx2 s[{P_OUT}:{P_OUT + 1}], s[0:1], 56')
    A(f'v_lshrrev_b32 v1, 6, v0')
    A(f'v_readfirstlane_b32 s{SW}, v1')
    A(f'v_and_b32 v{lane}, 63, v0')
    A(f'v_lshlrev_b32 v{L}, 4, v{lane}')
    A(f'v_add_u32 v{L + 1}, 4096, v{L}')
    A(f'v_add_u32 v{L + 2}, 8192, v{L}')
    xc = 8 // xr
    nrg, ncb = 32 // xr, 8 // xc
    lg = lambda x: int(math.log2(x))
    A(f's_and_b32 s{ST}, s2, 7')
    A(f's_lshr_b32 s{ST + 1}, s2, 3')
    A(f's_lshr_b32 s{ST + 2}, s{ST}, {lg(xc)}')
    A(f's_lshl_b32 s{ST + 2}, s{ST + 2}, {lg(nrg)}')
    A(f's_and_b32 s{ST + 3}, s{ST + 1}, {nrg - 1}')
    A(f's_add_u32 s{SRG}, s{ST + 2}, s{ST + 3}')
    A(f's_and_b32 s{ST + 2}, s{ST}, {xc - 1}')
    A(f's_lshl_b32 s{ST + 2}, s{ST + 2}, {lg(ncb)}')
    A(f's_lshr_b32 s{ST + 3}, s{ST + 1}, {lg(nrg)}')
    A(f's_add_u32 s{SCB}, s{ST + 2}, s{ST + 3}')
    A(f's_mul_i32 s{SWO}, s{SCB}, {48 * 5120}')
    A(f's_mul_i32 s{ST}, s{SW}, {12 * 5120}')
    A(f's_add_u32 s{SWO}, s{SWO}, s{ST}')
    A(f's_mul_i32 s{ST}, s{SRG}, {4 * 49152}')
    A(f's_mul_i32 s{ST + 1}, s{SW}, {12 * 1024}')
    A(f's_add_u32 s{ST}, s{ST}, s{ST + 1}')
    for t in range(4):
        A(f's_add_u32 s{ST + 1}, s{SW}, {t}')
        A(f's_and_b32 s{ST + 4 + t}, s{ST + 1}, 3')
        A(f's_mul_i32 s{ST + 1}, s{ST + 4 + t}, 49152')
        A(f's_add_u32 s{SHO + t}, s{ST}, s{ST + 1}')
    for q in range(1, 15):
        A(f's_add_u32 s{SWO + q}, s{SWO}, {4096 * q}')
    A('s_waitcnt lgkmcnt(0)')
    srd(A, SWD, P_WS, OFF['WD2' if final else 'WD1'], SZ['WD1'])
    srd(A, SH, P_WS, OFF['H'], SZ['H'])

    order = lambda j: (1, 2, 3, 0)

    def step_ops(j):
        ops = []
        for u in range(5):
            q = 5 * j + u
            ops.append((('w', j), f'buffer_load_dwordx4 {a(4 * q, 4)}, v{L}, s[{SWD}:{SWD + 3}], s{SWO + (q >> 2)} offen offset:{1024 * (q & 3)}'))
        for t in order(j):
            ops.append((('h', j, t), f'buffer_load_dwordx4 {v(HF + 16 * (j % HD) + 4 * t, 4)}, v{L + (j >> 2)}, s[{SH}:{SH + 3}], s{SHO + t} offen offset:{1024 * (j & 3)}'))
        return ops

    issued = []
    done = [0]

    def issue(op):
        A(op[1])
        issued.append(op[0])
        assert len(issued) - done[0] <= 63

    def wait_for(tag):
        last = max(i for i, t in enumerate(issued) if t == tag)
        n = len(issued) - 1 - last
        A(f's_waitcnt vmcnt({n})')
        done[0] = max(done[0], last + 1)

    for j in range(depth):
        for op in step_ops(j):
            issue(op)
    A(f'v_and_b32 v{n_}, 15, v{lane}')
    A(f'v_lshrrev_b32 v{g_}, 4, v{lane}')
    srd(A, SP, P_WS, OFF['SSP'], SZ['SSP'])
    A(f's_lshl_b32 s{ST}, s{SRG}, 2')
    A(f's_add_u32 s{ST}, s{ST}, s{SW}')
    tail = []
    if final:
        srd(A, SR, P_WS, OFF['X3'], SZ['X3'])
        srd(A, SO, P_OUT, 0, 2048 * 1280)
        A(f'v_mul_u32_u24 v{AD}, 1280, v{n_}')
        A(f'v_mul_u32_u24 v{T}, 40, v{g_}')
        A(f'v_add_u32 v{AD}, v{AD}, v{T}')
        A(f's_mul_i32 s{ST + 8}, s{ST}, {16 * 1280}')
        A(f's_mul_i32 s{ST + 1}, s{SCB}, 160')
        A(f's_add_u32 s{ST + 8}, s{ST + 8}, s{ST + 1}')
        A(f'v_lshlrev_b32 v{AD + 1}, 6, v{n_}')
        A(f'v_lshl_add_u32 v{AD + 1}, v{g_}, 4, v{AD + 1}')
        A(f's_lshl_b32 s{ST + 9}, s{ST}, 10')
        tail.append((('e', 0), f'buffer_load_dwordx4 {v(SSV, 4)}, v{AD + 1}, s[{SP}:{SP + 3}], s{ST + 9} offen'))
        tail.append((('e', 1), f'buffer_load_dwordx4 {v(RES, 4)}, v{AD}, s[{SR}:{SR + 3}], s{ST + 8} offen'))
        tail.append((('e', 1), f'buffer_load_dwordx4 {v(RES + 4, 4)}, v{AD}, s[{SR}:{SR + 3}], s{ST + 8} offen offset:16'))
        tail.append((('e', 1), f'buffer_load_dwordx2 {v(RES + 8, 2)}, v{AD}, s[{SR}:{SR + 3}], s{ST + 8} offen offset:32'))
    else:
        srd(A, SR, P_WS, OFF['XB'], SZ['XB'])
        srd(A, SO, P_WS, OFF['XT'], SZ['XT'])
        srd(A, SA2, P_WS, OFF['SS2'], SZ['SS2'])
        A(f's_and_b32 s{ST + 1}, s{ST}, 7')
        A(f'v_and_b32 v{T}, 7, v{n_}')
        A(f'v_xor_b32 v{T}, s{ST + 1}, v{T}')
        A(f'v_lshlrev_b32 v{T}, 5, v{T}')
        A(f'v_lshl_add_u32 v{T}, v{g_}, 3, v{T}')
        A(f'v_lshl_add_u32 v{AD}, v{n_}, 8, v{T}')
        A(f's_cmp_eq_u32 s{SCB}, 0')
        A(f's_cselect_b32 s{ST + 1}, 0, 99')
        A(f'v_cmp_eq_u32 s[{ST + 18}:{ST + 19}], s{ST + 1}, v{n_}')
        A(f'v_add_u32 v{T}, {(640 - 16) * 256}, v{AD}')
        A(f'v_cndmask_b32 v{AD + 2}, v{AD}, v{T}, s[{ST + 18}:{ST + 19}]')
        A(f's_lshr_b32 s{ST + 1}, s{ST}, 3')
        A(f's_mul_i32 s{ST + 1}, s{ST + 1}, {641 * 256}')
        A(f's_mul_i32 s{ST + 2}, s{SCB}, {80 * 256}')
        A(f's_add_u32 s{ST + 8}, s{ST + 1}, s{ST + 2}')
        A(f's_mul_i32 s{ST + 13}, s{SCB}, {80 * XT_STRIDE}')
        A(f's_lshl_b32 s{ST + 1}, s{ST}, 5')
        A(f's_add_u32 s{ST + 13}, s{ST + 13}, s{ST + 1}')
        for u in range(1, 5):
            A(f's_add_u32 s{ST + 8 + u}, s{ST + 8}, {4096 * u}')
            A(f's_add_u32 s{ST + 13 + u}, s{ST + 13}, {16 * XT_STRIDE * u}')
        A(f'v_lshlrev_b32 v{AD + 1}, 13, v{n_}')
        A(f'v_lshl_add_u32 v{AD + 1}, v{g_}, 4, v{AD + 1}')
        A(f's_lshl_b32 s{ST + 20}, s{ST}, 6')
        tail.append((('e', 0), f'buffer_load_dwordx4 {v(SSV, 4)}, v{AD + 1}, s[{SP}:{SP + 3}], s{ST + 20} offen'))
        for u in range(5):
            tail.append((('e', 1), f'buffer_load_dwordx2 {v(RES + 2 * u, 2)}, v{AD + 2 if u == 1 else AD}, s[{SR}:{SR + 3}], s{ST + 8 + u} offen'))
    for t in range(1, 4):
        A(f's_mul_i32 s{ST + 1}, s{ST + 4 + t}, 15360')
        A(f's_add_u32 s{ST + 1}, s{ST + 1}, {5120 * (t - 1)}')
        A(f'v_add_u32 v{AD + 2 + t}, s{ST + 1}, v{L}')
    pend = []
    for j in range(depth, 12):
        pend += step_ops(j)
    pend += tail

    def can_issue(op, j, t_done):
        if len(issued) - done[0] >= 63:
            return False
        if op[0][0] == 'h':
            return op[0][1] - HD < j
        return True

    for j in range(12):
        for ti, t in enumerate(order(j)):
            wait_for(('h', j, t))
            hf = v(HF + 16 * (j % HD) + 4 * t, 4)
            for u in range(5):
                d = v(ACC + 20 * t + 4 * u, 4)
                w = a(4 * (5 * j + u), 4)
                if final:
                    mfma(A, d, w, hf, d if j else None)
                else:
                    mfma(A, d, hf, w, d if j else None)
                if pend and can_issue(pend[0], j, ti):
                    issue(pend.pop(0))
                if j == 11 and ti >= 1:
                    tp = order(j)[ti - 1]
                    A(f'ds_write_b128 v{AD + 2 + tp}, {v(ACC + 20 * tp + 4 * u, 4)} offset:{1024 * u}')
    assert not pend
    A(f's_mul_i32 s{ST + 1}, s{SW}, 15360')
    A(f'v_add_u32 v{T}, s{ST + 1}, v{L}')
    wait_for(('e', 0))
    if final:
        A(f'v_add_f32 v{SSV}, v{SSV}, v{SSV + 1}')
        A(f'v_add_f32 v{SSV + 2}, v{SSV + 2}, v{SSV + 3}')
        A(f'v_add_f32 v{SSV}, v{SSV}, v{SSV + 2}')
    A('s_waitcnt lgkmcnt(0)')
    A('s_barrier')
    for u in range(5):
        for t in range(1, 4):
            A(f'ds_read_b128 {v(HF + 12 * u + 4 * (t - 1), 4)}, v{T} offset:{5120 * (t - 1) + 1024 * u}')
    A(f's_mov_b32 s{ST + 1}, {fhex(1 / 640)}')
    if final:
        A(f'v_mov_b32 v{SSV + 1}, v{SSV}')
        A(f'v_permlane32_swap_b32 v{SSV}, v{SSV + 1}')
        A(f'v_add_f32 v{SSV}, v{SSV}, v{SSV + 1}')
        A(f'v_mov_b32 v{SSV + 1}, v{SSV}')
        A(f'v_permlane16_swap_b32 v{SSV}, v{SSV + 1}')
        A(f'v_add_f32 v{SSV}, v{SSV}, v{SSV + 1}')
        A(f'v_mov_b32 v{T + 1}, {fhex(1e-5)}')
        A(f'v_fma_f32 v{SSV}, v{SSV}, s{ST + 1}, v{T + 1}')
        A(f'v_rcp_f32 v{SSV}, v{SSV}')
        A(f'v_mov_b32 v{SSV + 1}, v{SSV}')
    else:
        for sh in (8, 4, 2, 1):
            for q in range(4):
                A(f'v_add_f32_dpp v{SSV + q}, v{SSV + q}, v{SSV + q} row_ror:{sh} row_mask:0xf bank_mask:0xf')
        A(f'v_mov_b32 v{T + 1}, {fhex(1e-5)}')
        for q in range(4):
            A(f'v_fma_f32 v{SSV + q}, v{SSV + q}, s{ST + 1}, v{T + 1}')
        for q in range(4):
            A(f'v_rcp_f32 v{SSV + q}, v{SSV + q}')
        A(f'v_lshlrev_b32 v{AD + 1}, 12, v{n_}')
        A(f'v_lshl_add_u32 v{AD + 1}, v{g_}, 3, v{AD + 1}')
    wait_for(('e', 1))
    XF = ACC + 20
    SQ = ACC + 40
    for u in range(5):
        for h in range(2):
            A(f'v_lshlrev_b32 v{XF + 4 * u + 2 * h}, 16, v{RES + 2 * u + h}')
            A(f'v_and_b32 v{XF + 4 * u + 2 * h + 1}, 0xffff0000, v{RES + 2 * u + h}')
    for u in range(5):
        A(f's_waitcnt lgkmcnt({12 - 3 * u})')
        b = HF + 12 * u
        for h in range(2):
            A(f'v_pk_add_f32 {v(b + 2 * h, 2)}, {v(b + 2 * h, 2)}, {v(b + 4 + 2 * h, 2)}')
            A(f'v_pk_add_f32 {v(ACC + 4 * u + 2 * h, 2)}, {v(ACC + 4 * u + 2 * h, 2)}, {v(b + 8 + 2 * h, 2)}')
        for h in range(2):
            A(f'v_pk_add_f32 {v(b + 2 * h, 2)}, {v(b + 2 * h, 2)}, {v(ACC + 4 * u + 2 * h, 2)}')
        for h in range(2):
            sc = v(SSV, 2) if final else v(SSV + 2 * h, 2)
            A(f'v_pk_fma_f32 {v(XF + 4 * u + 2 * h, 2)}, {v(b + 2 * h, 2)}, {sc}, {v(XF + 4 * u + 2 * h, 2)}')
        for h in range(2):
            A(f'v_cvt_pk_bf16_f32 v{RES + 2 * u + h}, v{XF + 4 * u + 2 * h}, v{XF + 4 * u + 2 * h + 1}')
        if final:
            if u == 1:
                A(f'buffer_store_dwordx4 {v(RES, 4)}, v{AD}, s[{SO}:{SO + 3}], s{ST + 8} offen')
            if u == 3:
                A(f'buffer_store_dwordx4 {v(RES + 4, 4)}, v{AD}, s[{SO}:{SO + 3}], s{ST + 8} offen offset:16')
            if u == 4:
                A(f'buffer_store_dwordx2 {v(RES + 8, 2)}, v{AD}, s[{SO}:{SO + 3}], s{ST + 8} offen offset:32')
        else:
            A(f'buffer_store_dwordx2 {v(RES + 2 * u, 2)}, v{AD + 1}, s[{SO}:{SO + 3}], s{ST + 13 + u} offen')
    if not final:
        for i in range(4):
            A(f'v_cndmask_b32 v{XF + 4 + i}, v{XF + 4 + i}, 0, s[{ST + 18}:{ST + 19}]')
        for h in range(2):
            A(f'v_pk_mul_f32 {v(SQ + 2 * h, 2)}, {v(XF + 2 * h, 2)}, {v(XF + 2 * h, 2)}')
        for u in range(1, 5):
            for h in range(2):
                A(f'v_pk_fma_f32 {v(SQ + 2 * h, 2)}, {v(XF + 4 * u + 2 * h, 2)}, {v(XF + 4 * u + 2 * h, 2)}, {v(SQ + 2 * h, 2)}')
        for sh in (8, 4, 2, 1):
            for q in range(4):
                A(f'v_add_f32_dpp v{SQ + q}, v{SQ + q}, v{SQ + q} row_ror:{sh} row_mask:0xf bank_mask:0xf')
        for i in range(1, 4):
            A(f'v_cmp_eq_u32 vcc, {i}, v{n_}')
            A(f'v_cndmask_b32 v{SQ}, v{SQ}, v{SQ + i}, vcc')
        A(f'v_lshl_add_u32 v{T}, v{g_}, 2, v{n_}')
        A(f'v_lshlrev_b32 v{T}, 2, v{T}')
        A(f'v_cmp_gt_u32 vcc, 4, v{n_}')
        A(f's_and_saveexec_b64 s[{ST + 2}:{ST + 3}], vcc')
        A(f'buffer_atomic_add_f32 v{SQ}, v{T}, s[{SA2}:{SA2 + 3}], s{ST + 20} offen sc1')
    A(f'L_{name}_end:')
    A('s_endpgm')
    return dict(grid=256, block=256, lds=K4_LDS, vgpr=R.hi, agpr=240, sgpr=96)
```

```python
S, D, F = 2048, 640, 1536
XT_STRIDE = 4096


def _al(x, a=4096):
    return (x + a - 1) // a * a


SZ = dict(
    XT=640 * XT_STRIDE,
    XB=16 * 641 * 256,
    H=128 * 48 * 1024,
    WGU=64 * 20 * 3 * 1024,
    WD1=8 * 48 * 5 * 1024,
    WD2=8 * 48 * 5 * 1024,
    WT=320 * 8192,
    G=400 * 1024,
    SS0=8192,
    SS2=8192,
    SSP=16 * 2048 * 4,
    X3=2048 * 1280,
)
OFF = {}
_p = 0
for _k, _v in SZ.items():
    OFF[_k] = _p
    _p = _al(_p + _v)
WS_USED = _p


def freq(c):
    ks, l = c >> 4, c & 15
    k1 = 10 if ks == 1 else ks >> 1
    if c == 0:
        return 320
    return k1 + 20 * l if ks % 2 == 0 else 320 - k1 - 20 * l


def sigma(g, e):
    return 4 * g + e if e < 4 else 16 + 4 * g + (e - 4)
```

```python
import sys, os
sys.path.insert(0, os.path.dirname(os.path.abspath(__file__)))
from asmlib import *
from layout import *
import k1, k2, k3, k4

NAME = 'interleave_layers__spectral_gfnet__glu_gated_reglu__prompt'
HEAD = open(f'cdna_kernels/{NAME}.s.ref').read().split('; Override launch')[0]


def build(opts=None, empties=0):
    o = dict(xr3=4, pre3=3, xr4=4, depth4=7)
    o.update(opts or {})
    ks = [
        ('k1', lambda A: k1.gen_k1(A)),
        ('k2', lambda A: k2.gen_k2(A, 'k2', 'SS0')),
        ('k3', lambda A: k3.gen_k3(A, 'k3', False, o['xr3'], o['pre3'])),
        ('k4', lambda A: k4.gen_k4(A, 'k4', False, o['xr4'], o['depth4'])),
        ('k5', lambda A: k2.gen_k2(A, 'k5', 'SS2')),
        ('k6', lambda A: k3.gen_k3(A, 'k6', True, o['xr3'], o['pre3'])),
        ('k7', lambda A: k4.gen_k4(A, 'k7', True, o['xr4'], o['depth4'])),
    ]
    launches, text, desc = [], [], []
    for nm, fn in ks:
        A = Asm()
        lab = nm + '_kernel'
        A(f'.globl {lab}\n.p2align 8\n.type {lab},@function\n{lab}:')
        m = fn(A)
        text.append(A.text())
        launches.append(f"; @launch kernel={lab} grid=({m['grid']},1,1) block=({m['block']},1,1) lds={m['lds']}")
        desc.append(descriptor(lab, m['vgpr'], m['agpr'], m['sgpr']))
        print(nm, m, 'lines', text[-1].count('\n'), 'nops', text[-1].count('s_nop'), file=sys.stderr)
    if empties:
        lab = 'e_kernel'
        text.append(f'.globl {lab}\n.p2align 8\n.type {lab},@function\n{lab}:\n    s_endpgm\n')
        desc.append(descriptor(lab, 8, 0, 16))
        launches += [f'; @launch kernel={lab} grid=(256,1,1) block=(256,1,1) lds=0'] * empties
    return (HEAD + '\n'.join(launches) + '\n.amdgcn_target "amdgcn-amd-amdhsa--gfx950"\n.text\n' + ''.join(text)
            + '.section .rodata,"a"\n' + ''.join(desc))


if __name__ == '__main__':
    out = f'cdna_kernels/{NAME}.s'
    opts = {}
    emp = 0
    for a_ in sys.argv[1:]:
        if '=' in a_:
            k, val = a_.split('=')
            if k == 'out':
                out = val
            elif k == 'empties':
                emp = int(val)
            else:
                opts[k] = int(val)
    open(out, 'w').write(build(opts, emp))
```
